```python
import torch

def _softmax(x, axis=-1):
    return torch.softmax(x, dim=axis)
def _gelu(x):
    return torch.nn.functional.gelu(x, approximate="tanh")
def _silu(x):
    return torch.nn.functional.silu(x)
def _sigmoid(x):
    return torch.sigmoid(x)
def _layernorm(x, axis=-1, eps=1e-5):
    m = x.mean(dim=axis, keepdim=True)
    v = x.var(dim=axis, keepdim=True, unbiased=False)
    return (x - m) / torch.sqrt(v + eps)
def _scatter_add(tgt, idx, src, axis=0):
    return tgt.clone().index_add_(axis, idx, src)
def _segment_sum(src, seg, n):
    out = torch.zeros((n,) + src.shape[1:], dtype=src.dtype)
    return out.index_add_(0, seg, src)
def _pad(x, pw):
    flat = tuple(v for pair in reversed(pw) for v in pair)
    return torch.nn.functional.pad(x, flat)

kernel_name = 'concat_heads__gqa_block_cached__gqa_block_cached__near_ridge'

def setup_inputs():

    _w = (lambda a: (lambda t: t.to(torch.bfloat16) if t.is_floating_point() else t)(torch.as_tensor(a)))
    def _A_setup():
        B, Sq, D = 8, 256, 640
        Hq, Hkv, Sk, Dh = 32, 32, 1024, 128
        assert Hq % Hkv == 0, (Hq, Hkv)
        return {
            "x": _w((lambda *s: torch.randn(*s, dtype=torch.bfloat16) * 0.8)(B, Sq, D)),
            "k_cache": _w((lambda *s: torch.randn(*s, dtype=torch.bfloat16) * 0.8)(B, Hkv, Sk, Dh)),
            "v_cache": _w((lambda *s: torch.randn(*s, dtype=torch.bfloat16) * 0.05)(B, Hkv, Sk, Dh)),
            "wq": _w((lambda *s: torch.randn(*s, dtype=torch.bfloat16) * 0.8)(D, Hq * Dh) * (D ** -0.5)),
            "wo": _w((lambda *s: torch.randn(*s, dtype=torch.bfloat16) * 0.05)(Hq * Dh, D) * ((Hq * Dh) ** -0.5)),
        }
    _A_in = _A_setup()

    def _B_setup():
        B, Sq, D = 8, 256, 640
        Hq, Hkv, Sk, Dh = 32, 32, 1024, 128
        assert Hq % Hkv == 0, (Hq, Hkv)
        return {
            "x": _w((lambda *s: torch.randn(*s, dtype=torch.bfloat16) * 0.8)(B, Sq, D)),
            "k_cache": _w((lambda *s: torch.randn(*s, dtype=torch.bfloat16) * 0.8)(B, Hkv, Sk, Dh)),
            "v_cache": _w((lambda *s: torch.randn(*s, dtype=torch.bfloat16) * 0.05)(B, Hkv, Sk, Dh)),
            "wq": _w((lambda *s: torch.randn(*s, dtype=torch.bfloat16) * 0.8)(D, Hq * Dh) * (D ** -0.5)),
            "wo": _w((lambda *s: torch.randn(*s, dtype=torch.bfloat16) * 0.05)(Hq * Dh, D) * ((Hq * Dh) ** -0.5)),
        }
    _B_in = _B_setup()

    return {
        "A_x": _A_in["x"],
        "A_k_cache": _A_in["k_cache"],
        "A_v_cache": _A_in["v_cache"],
        "A_wq": _A_in["wq"],
        "A_wo": _A_in["wo"],
        "B_x": _B_in["x"],
        "B_k_cache": _B_in["k_cache"],
        "B_v_cache": _B_in["v_cache"],
        "B_wq": _B_in["wq"],
        "B_wo": _B_in["wo"],
    }

def reference(A_x, A_k_cache, A_v_cache, A_wq, A_wo, B_x, B_k_cache, B_v_cache, B_wq, B_wo):
    def _A_ref(x, k_cache, v_cache, wq, wo):
        B, Sq, D = x.shape
        Hq, Dh = 32, 128
        Hkv = k_cache.shape[1]
        rep = Hq // Hkv
        q = (lambda x, *d: x.permute(*d))((x @ wq).reshape(B, Sq, Hq, Dh), 0, 2, 1, 3)
        k = (lambda x, n, axis: torch.repeat_interleave(x, n, dim=axis))(k_cache, rep, axis=1)
        v = (lambda x, n, axis: torch.repeat_interleave(x, n, dim=axis))(v_cache, rep, axis=1)
        scores = torch.einsum("bhqd,bhkd->bhqk", q, k) * (Dh ** -0.5)
        p = _softmax(scores, axis=-1)
        o = torch.einsum("bhqk,bhkd->bhqd", p, v)
        return (lambda x, *d: x.permute(*d))(o, 0, 2, 1, 3).reshape(B, Sq, Hq * Dh) @ wo

    def _B_ref(x, k_cache, v_cache, wq, wo):
        B, Sq, D = x.shape
        Hq, Dh = 32, 128
        Hkv = k_cache.shape[1]
        rep = Hq // Hkv
        q = (lambda x, *d: x.permute(*d))((x @ wq).reshape(B, Sq, Hq, Dh), 0, 2, 1, 3)
        k = (lambda x, n, axis: torch.repeat_interleave(x, n, dim=axis))(k_cache, rep, axis=1)
        v = (lambda x, n, axis: torch.repeat_interleave(x, n, dim=axis))(v_cache, rep, axis=1)
        scores = torch.einsum("bhqd,bhkd->bhqk", q, k) * (Dh ** -0.5)
        p = _softmax(scores, axis=-1)
        o = torch.einsum("bhqk,bhkd->bhqd", p, v)
        return (lambda x, *d: x.permute(*d))(o, 0, 2, 1, 3).reshape(B, Sq, Hq * Dh) @ wo

    a = _A_ref(A_x, A_k_cache, A_v_cache, A_wq, A_wo)
    b = _B_ref(B_x, B_k_cache, B_v_cache, B_wq, B_wo)
    return torch.concatenate([a, b], axis=-1)
```

```python
import re

def v(i, n=1):
    return f"v{i}" if n == 1 else f"v[{i}:{i+n-1}]"
def a(i, n=1):
    return f"a{i}" if n == 1 else f"a[{i}:{i+n-1}]"
def s(i, n=1):
    return f"s{i}" if n == 1 else f"s[{i}:{i+n-1}]"

class R:
    def __init__(self, kind, idx, n=1):
        self.kind, self.idx, self.n = kind, idx, n
    def __str__(self):
        return (v if self.kind == 'v' else a)(self.idx, self.n)
    def sub(self, off, n=1):
        assert off + n <= self.n, (off, n, self.n)
        return R(self.kind, self.idx + off, n)

_REG = re.compile(r"\b([vas])(?:(\d+)|\[(\d+):(\d+)\])")
def regs_of(tok):
    out = set()
    for m in _REG.finditer(tok):
        k = m.group(1)
        if m.group(2) is not None:
            out.add((k, int(m.group(2))))
        else:
            for i in range(int(m.group(3)), int(m.group(4)) + 1):
                out.add((k, i))
    if re.search(r"\bvcc\b", tok): out.add(('s', 'vcc'))
    if re.search(r"\bm0\b", tok): out.add(('s', 'm0'))
    if re.search(r"\bexec\b", tok): out.add(('s', 'exec'))
    return out

TRANS = ("v_exp_f32", "v_log_f32", "v_rcp_f32", "v_rsq_f32", "v_sqrt_f32")

def parse(line):
    t = line.split(";")[0].split("//")[0].strip()
    if not t or t.endswith(":") or t.startswith("."):
        return None
    parts = t.split(None, 1)
    op = parts[0]
    ops = [x.strip() for x in parts[1].split(",")] if len(parts) > 1 else []
    dst, src = set(), set()
    if op.startswith("v_mfma"):
        dst = regs_of(ops[0]); src = regs_of(ops[1]) | regs_of(ops[2]) | regs_of(ops[3])
    elif op.startswith("v_cmp"):
        dst = regs_of(ops[0]); src = set().union(*[regs_of(x) for x in ops[1:]])
    elif op.startswith("v_permlane32_swap") or op.startswith("v_permlane16_swap"):
        dst = regs_of(ops[0]) | regs_of(ops[1]); src = set(dst)
    elif op.startswith("v_fmac") or op.startswith("v_pk_fmac"):
        dst = regs_of(ops[0]); src = set().union(*[regs_of(x) for x in ops])
    elif op.startswith("v_"):
        dst = regs_of(ops[0]); src = set().union(*[regs_of(x) for x in ops[1:]]) if len(ops) > 1 else set()
    elif op.startswith("ds_read"):
        dst = regs_of(ops[0]); src = regs_of(ops[1])
    elif op.startswith("ds_write"):
        src = set().union(*[regs_of(x) for x in ops])
    elif op.startswith("buffer_load") or op.startswith("global_load"):
        if t.rstrip().endswith("lds"):
            src = set().union(*[regs_of(x) for x in ops]) | {('s', 'm0')}
        else:
            dst = regs_of(ops[0]); src = set().union(*[regs_of(x) for x in ops[1:]])
    elif op.startswith("buffer_store") or op.startswith("global_store") or op.startswith("global_atomic") or op.startswith("buffer_atomic"):
        src = set().union(*[regs_of(x) for x in ops])
    elif op.startswith("s_"):
        if op.startswith(("s_cmp", "s_cbranch", "s_branch", "s_waitcnt", "s_barrier", "s_nop", "s_endpgm", "s_setprio", "s_sleep")):
            src = set().union(*[regs_of(x) for x in ops]) if ops else set()
        else:
            dst = regs_of(ops[0]) if ops else set()
            src = set().union(*[regs_of(x) for x in ops[1:]]) if len(ops) > 1 else set()
    return op, dst, src, ops

def mfma_passes(op):
    return 8 if "32x32x16" in op else 4

def check_hazards(lines, name=""):
    ins = []
    for ln in lines:
        p = parse(ln)
        if p: ins.append((ln.strip(), p))
    errs = []
    n = len(ins)
    for i, (txt, (op, dst, src, ops)) in enumerate(ins):
        isvalu = op.startswith("v_") and not op.startswith("v_mfma")
        ismfma = op.startswith("v_mfma")
        states = 0
        for j in range(i + 1, min(n, i + 24)):
            t2, (op2, dst2, src2, ops2) = ins[j]
            v2 = op2.startswith("v_") and not op2.startswith("v_mfma")
            m2 = op2.startswith("v_mfma")
            mem2 = op2.startswith(("ds_", "buffer_", "global_"))
            need = 0
            if isvalu:
                vd = {r for r in dst if r[0] in 'va'}
                sd = {r for r in dst if r[0] == 's'}
                if m2 and (vd & src2): need = max(need, 2)
                if op2.startswith("v_permlane") and (vd & src2): need = max(need, 2)
                if op2.startswith(("v_readfirstlane", "v_readlane")) and (vd & src2): need = max(need, 1)
                if op.split("_e")[0] in TRANS and v2 and (vd & src2) and op2.split("_e")[0] not in TRANS: need = max(need, 1)
                if op.split("_e")[0] in TRANS and v2 and (vd & src2): need = max(need, 1)
                if sd and v2 and (sd & src2): need = max(need, 2)
                if sd and op2.startswith(("buffer_", "global_")) and (sd & src2): need = max(need, 5)
                if "dpp" in t2 and (vd & src2): need = max(need, 2)
            if ismfma:
                ps = mfma_passes(op)
                big = {4: 8, 8: 12}[ps]
                if m2:
                    cA = regs_of(ops2[1]) | regs_of(ops2[2]); cC = regs_of(ops2[3])
                    if dst & cA: need = max(need, big)
                    if dst & cC and not (dst == cC and mfma_passes(op2) == ps): need = max(need, big - 2)
                    if (dst & dst2) and not (dst == dst2): need = max(need, big - 2)
                elif v2:
                    if dst & (src2 | dst2): need = max(need, big)
                    cC = regs_of(ops[3])
                    if cC & dst2: need = max(need, {4: 3, 8: 7}[ps])
                elif mem2:
                    if dst & (src2 | dst2): need = max(need, big)
            if op.startswith("s_") and ('s', 'm0') in dst and ('s', 'm0') in src2 and mem2: need = max(need, 1)
            if op.startswith(("buffer_store_dwordx4", "global_store_dwordx4", "buffer_store_dwordx3", "ds_write_b128")) and op.startswith(("buffer", "global")):
                data = regs_of(ops[0]) if op.startswith("buffer") else regs_of(ops[1])
                if (v2 or mem2) and (data & dst2): need = max(need, 2)
            if need > states:
                errs.append(f"{name}: hazard need {need} have {states}: [{i}] {txt}  ->  [{j}] {t2}")
            if op2 == "s_nop":
                states += int(ops2[0], 0) + 1
            else:
                states += 1
            if states >= 20: break
    return errs

class Emit:
    def __init__(self):
        self.lines = []
        self.lds_issued = 0
        self.lds_done = 0
        self.tag = {}
    def __call__(self, txt):
        self.lines.append("    " + txt)
    def label(self, l):
        self.lines.append(l + ":")
    def c(self, txt):
        self.lines.append("    ; " + txt)
    def raw(self, txt):
        self.lines.append(txt)
    def lds(self, txt, tag=None):
        self.lds_issued += 1
        if tag is not None: self.tag[tag] = self.lds_issued
        self(txt)
    def need(self, tags, extra=""):
        idx = max([self.tag[t] for t in tags], default=0)
        if idx <= self.lds_done:
            if extra: self("s_waitcnt " + extra)
            return
        n = self.lds_issued - idx
        n = min(n, 15)
        self.lds_done = self.lds_issued - n
        self(f"s_waitcnt {extra + ' ' if extra else ''}lgkmcnt({n})")
    def lgkm0(self):
        self.lds_done = self.lds_issued
    def text(self):
        return "\n".join(self.lines) + "\n"

def kernel_desc(name, vgpr, accum, sgpr=102):
    return f""".section .rodata,"a"
.p2align 6
.amdhsa_kernel {name}
  .amdhsa_next_free_vgpr {vgpr}
  .amdhsa_next_free_sgpr {sgpr}
  .amdhsa_accum_offset {accum}
  .amdhsa_group_segment_fixed_size 0
  .amdhsa_kernarg_size 104
  .amdhsa_user_sgpr_count 2
  .amdhsa_user_sgpr_kernarg_segment_ptr 1
  .amdhsa_system_sgpr_workgroup_id_x 1
.end_amdhsa_kernel
"""
```

```python
from asmlib import *
K2 = "oproj_kernel"
MF32 = "v_mfma_f32_32x32x16_bf16"

def gen_k2(o):
    e = Emit()
    sO, sW, sOut = 4, 8, 12
    sWave, sCnt, sOo, sWo, sLb = 16, 17, 18, 19, 20
    J, I, BLK, B, QP, NQ, TMP = 24, 25, 26, 27, 28, 29, 30
    LANE, OD, RA = 1, 2, 3
    WD = lambda p: 4 + p
    t0, t1, t2, t3 = 10, 11, 12, 13
    OF = lambda slot, qt: 16 + 8 * slot + 4 * qt
    WF = lambda st, nt: 80 + 20 * st + 4 * nt
    ACC = lambda nt, qt: (nt * 2 + qt) * 16
    e.raw(f".globl {K2}\n.p2align 8\n.type {K2},@function")
    e.label(K2)
    e("s_cmp_ge_u32 s2, 256")
    e("s_cbranch_scc1 K2_END")
    e("s_load_dwordx2 s[40:41], s[0:1], 32")
    e("s_load_dwordx2 s[42:43], s[0:1], 72")
    e("s_load_dwordx2 s[44:45], s[0:1], 80")
    e("s_load_dwordx2 s[46:47], s[0:1], 96")
    e(f"s_and_b32 s{J}, s2, 7")
    e(f"s_lshr_b32 s{I}, s2, 3")
    e(f"s_lshr_b32 s{BLK}, s{J}, 2")
    e(f"s_and_b32 s{B}, s{J}, 3")
    e(f"s_lshl_b32 s{B}, s{B}, 1")
    e(f"s_lshr_b32 s{TMP}, s{I}, 4")
    e(f"s_add_u32 s{B}, s{B}, s{TMP}")
    e(f"s_lshr_b32 s{QP}, s{I}, 2")
    e(f"s_and_b32 s{QP}, s{QP}, 3")
    e(f"s_and_b32 s{NQ}, s{I}, 3")
    e(f"v_lshrrev_b32 v{t0}, 6, v0")
    e(f"v_and_b32 v{LANE}, 63, v0")
    e(f"v_readfirstlane_b32 s{sWave}, v{t0}")
    e("s_waitcnt lgkmcnt(0)")
    e(f"s_cmp_eq_u32 s{BLK}, 0")
    e("s_cselect_b32 s40, s40, s42"); e("s_cselect_b32 s41, s41, s43")
    e(f"s_lshl_b32 s{TMP}, s{BLK}, 3"); e(f"s_add_u32 s{TMP}, s{TMP}, s{B}")
    e(f"s_lshl_b32 s{TMP}, s{TMP}, 2"); e(f"s_add_u32 s{TMP}, s{TMP}, s{QP}")
    e(f"s_lshl_b32 s{TMP}, s{TMP}, 2"); e(f"s_add_u32 s{TMP}, s{TMP}, s{sWave}")
    e(f"s_lshl_b32 s{TMP}, s{TMP}, 17")
    e(f"s_add_u32 s{sO}, s46, s{TMP}"); e(f"s_addc_u32 s{sO+1}, s47, 0")
    e(f"s_mov_b32 s{sO+2}, {128<<10}"); e(f"s_mov_b32 s{sO+3}, 0x20000")
    e(f"s_mul_i32 s{TMP}, s{sWave}, {1024*1280}")
    e(f"s_mul_i32 s{TMP+1}, s{NQ}, 320")
    e(f"s_add_u32 s{TMP}, s{TMP}, s{TMP+1}")
    e(f"s_add_u32 s{sW}, s40, s{TMP}"); e(f"s_addc_u32 s{sW+1}, s41, 0")
    e(f"s_sub_u32 s{sW+2}, {1024*1280}, s{TMP+1}"); e(f"s_mov_b32 s{sW+3}, 0x20000")
    e(f"s_lshl_b32 s{TMP}, s{B}, 2"); e(f"s_add_u32 s{TMP}, s{TMP}, s{QP}")
    e(f"s_mul_i32 s{TMP}, s{TMP}, {64*2560}")
    e(f"s_mul_i32 s{TMP+2}, s{BLK}, 1280")
    e(f"s_add_u32 s{TMP}, s{TMP}, s{TMP+2}"); e(f"s_add_u32 s{TMP}, s{TMP}, s{TMP+1}")
    e(f"s_add_u32 s{sOut}, s44, s{TMP}"); e(f"s_addc_u32 s{sOut+1}, s45, 0")
    e(f"s_sub_u32 s{sOut+2}, {2048*2560}, s{TMP}"); e(f"s_mov_b32 s{sOut+3}, 0x20000")
    e(f"s_mul_i32 s{sLb}, s{sWave}, 40960")
    L = LANE
    e(f"v_lshlrev_b32 v{OD}, 4, v{L}")
    e(f"s_mov_b32 s{TMP}, 52429")
    for p in range(5):
        e(f"v_add_u32 v{t0}, {p*64}, v{L}")
        e(f"v_mul_lo_u32 v{t1}, v{t0}, s{TMP}")
        e(f"v_lshrrev_b32 v{t1}, 20, v{t1}")
        e(f"v_mul_u32_u24 v{t2}, 20, v{t1}")
        e(f"v_sub_u32 v{t2}, v{t0}, v{t2}")
        e(f"v_mul_u32_u24 v{t1}, 1280, v{t1}")
        e(f"v_lshl_add_u32 v{t1}, v{t2}, 4, v{t1}")
        e(f"v_subrev_u32 v{WD(p)}, {(p*1024) if p < 4 else 0}, v{t1}")
    def loads_w(slot):
        f = [f"s_add_u32 m0, s{sLb}, {slot*5120}", "s_nop 0"]
        for p in range(4):
            f.append(f"buffer_load_dwordx4 v{WD(p)}, {s(sW,4)}, s{sWo} offen offset:{p*1024} lds")
        f += [f"s_add_u32 m0, s{sLb}, {slot*5120+4096}", "s_nop 0",
              f"buffer_load_dwordx4 v{WD(4)}, {s(sW,4)}, s{sWo} offen lds",
              f"s_add_u32 s{sWo}, s{sWo}, {16*1280}"]
        return f
    def load_o(slot, qt):
        return f"buffer_load_dwordx4 {v(OF(slot,qt),4)}, v{OD}, {s(sO,4)}, s{sOo} offen offset:{qt*1024}"
    e(f"s_mov_b32 s{sOo}, 0"); e(f"s_mov_b32 s{sWo}, 0")
    for slot in range(8):
        for x in loads_w(slot): e(x)
        e(load_o(slot, 0)); e(load_o(slot, 1))
        e(f"s_add_u32 s{sOo}, s{sOo}, 2048")
    e(f"v_bfe_u32 v{t0}, v{L}, 2, 2")
    e(f"v_lshrrev_b32 v{t1}, 5, v{L}")
    e(f"v_lshl_add_u32 v{t1}, v{t1}, 2, v{t0}")
    e(f"v_mul_u32_u24 v{t1}, 320, v{t1}")
    e(f"v_bfe_u32 v{t2}, v{L}, 4, 1")
    e(f"v_and_b32 v{t3}, 3, v{L}")
    e(f"v_lshl_add_u32 v{t2}, v{t2}, 2, v{t3}")
    e(f"v_lshl_add_u32 v{t1}, v{t2}, 3, v{t1}")
    e(f"v_add_u32 v{RA}, s{sLb}, v{t1}")
    for i in range(160): e(f"v_accvgpr_write_b32 a{i}, 0")
    def reads(slot, st):
        return [lambda nt=nt, sec=sec: e.lds(f"ds_read_b64_tr_b16 {v(WF(st,nt)+2*sec,2)}, v{RA} offset:{slot*5120+nt*64+sec*2560}", ('w', st, nt))
                for nt in range(5) for sec in range(2)]
    e("s_waitcnt vmcnt(49)")
    for r in reads(0, 0): r()
    e(f"s_mov_b32 s{sCnt}, 8")
    e.label("K2_LOOP")
    for t in range(8):
        st = t % 2
        e("s_waitcnt vmcnt(42) lgkmcnt(0)"); e.lgkm0()
        rd = reads((t + 1) % 8, 1 - st)
        lw = loads_w(t)
        fill = {i: [] for i in range(10)}
        for n, r in enumerate(rd): fill[n // 2].append(r)
        for n, x in enumerate(lw): fill[n].append(x)
        fill[4].append(load_o(t, 0))
        fill[9] += [load_o(t, 1), f"s_add_u32 s{sOo}, s{sOo}, 2048"]
        i = 0
        for qt in range(2):
            for nt in range(5):
                acc = a(ACC(nt, qt), 16)
                e(f"{MF32} {acc}, {v(WF(st,nt),4)}, {v(OF(t,qt),4)}, {acc}")
                for f in fill[i]:
                    f() if callable(f) else e(f)
                i += 1
    e(f"s_sub_u32 s{sCnt}, s{sCnt}, 1")
    e(f"s_cmp_lg_u32 s{sCnt}, 0")
    e("s_cbranch_scc1 K2_LOOP")
    e("s_waitcnt vmcnt(0) lgkmcnt(0)")
    e(f"v_add_u32 v{t0}, s{sLb}, v{OD}")
    e("s_nop 15")
    for tl in range(10):
        for i4 in range(4):
            e(f"ds_write_b128 v{t0}, {a(tl*16+4*i4,4)} offset:{(tl*4+i4)*1024}")
    e(f"s_lshl_b32 s{TMP}, s{sWave}, 10")
    e(f"v_add_u32 v{WD(0)}, s{TMP}, v{OD}")
    for w in range(1, 4): e(f"v_add_u32 v{WD(w)}, {w*40960}, v{WD(0)}")
    e(f"v_and_b32 v{t1}, 31, v{L}")
    e(f"v_mul_u32_u24 v{t1}, 2560, v{t1}")
    e(f"v_lshrrev_b32 v{t2}, 5, v{L}")
    e(f"v_lshl_add_u32 v{t1}, v{t2}, 3, v{t1}")
    e(f"s_lshl_b32 s{TMP}, s{sWave}, 4")
    e(f"v_add_u32 v{t1}, s{TMP}, v{t1}")
    e(f"s_mov_b32 s{sOo}, {32*2560}")
    e("s_waitcnt lgkmcnt(0)")
    e("s_barrier")
    e.lgkm0()
    RB = lambda tl, w: 16 + (tl * 4 + w) * 4
    for tl in range(10):
        for w in range(4):
            e.lds(f"ds_read_b128 {v(RB(tl,w),4)}, v{WD(w)} offset:{tl*4096}", ('r', tl, w))
    for tl in range(10):
        nt, qt = tl // 2, tl % 2
        e.need([('r', tl, 3)])
        for i in range(4):
            e(f"v_add_f32 v{RB(tl,0)+i}, v{RB(tl,0)+i}, v{RB(tl,1)+i}")
            e(f"v_add_f32 v{RB(tl,2)+i}, v{RB(tl,2)+i}, v{RB(tl,3)+i}")
        for i in range(4):
            e(f"v_add_f32 v{RB(tl,0)+i}, v{RB(tl,0)+i}, v{RB(tl,2)+i}")
        e(f"v_cvt_pk_bf16_f32 v{RB(tl,1)}, v{RB(tl,0)}, v{RB(tl,0)+1}")
        e(f"v_cvt_pk_bf16_f32 v{RB(tl,1)+1}, v{RB(tl,0)+2}, v{RB(tl,0)+3}")
        so = f"s{sOo}" if qt else "0"
        e(f"buffer_store_dwordx2 {v(RB(tl,1),2)}, v{t1}, {s(sOut,4)}, {so} offen offset:{nt*64}")
    e.label("K2_END")
    e("s_endpgm")
    return e
```

```python
import sys, json
from asmlib import *

K1 = "attn_kernel"
K2 = "oproj_kernel"

DEF = dict(stamps=0, nt=1, la=4, dma_gaps=None, k1only=0, skip_q=0, no_dma=0, no_bar=0, no_valu=0, no_lds=0)

S_ = lambda p, qt: 32 * p + 16 * qt
CI = lambda qt: 64 + 16 * qt
P_ = lambda p, qt, sx: 96 + 16 * p + 8 * qt + 4 * sx
QW = lambda qt, ks: 128 + 32 * qt + 4 * ks
KA = lambda k: 192 + k
KAB = lambda k: 200 + k
VA = lambda k: 208 + k
VAB = lambda k: 212 + k
L_ = lambda qt: 216 + qt
KD = lambda e: 218 + e
VD = 220
LANE = 221
T = lambda k: 222 + k
XD = lambda e: 238 + e
WD = lambda e: 242 + e
XA = lambda k: 246 + k
XAB = lambda k: 248 + k
WA = lambda k: 192 + k
WAB = lambda k: 196 + k
OD = 250
O_ = lambda dt, qt: (dt * 2 + qt) * 16
QP = lambda qt, ks: 128 + 32 * qt + 4 * ks
KF = lambda g: 192 + 4 * g
VF = lambda g: 224 + 4 * g
XF = lambda st, qt: 128 + 40 * st + 4 * qt
WF = lambda st, d8: 128 + 40 * st + 8 + 4 * d8
sX, sW, sK, sV, sO = 4, 8, 12, 16, 20
sWave, sW2k, sW4k, sCnt, sXo, sWo, sQd, sQr = 24, 25, 26, 27, 28, 29, 30, 31
sKV, sHead, sC, sOo = 32, 33, 34, 35
sPB = lambda k: 36 + k
sT = lambda k: 40 + k
sStamp = lambda k: 60 + 2 * k
sDbg = 80

MF32 = "v_mfma_f32_32x32x16_bf16"

def stamp(e, o, k):
    if o['stamps']:
        e(f"s_memtime {s(sStamp(k), 2)}")

def interleave(e, mf, fill):
    for i, m in enumerate(mf):
        m() if callable(m) else e(m)
        for f in fill.get(i, []):
            f() if callable(f) else e(f)

def gen_k1(o):
    e = Emit()
    nt = " nt" if o['nt'] else ""
    e.raw(f".globl {K1}\n.p2align 8\n.type {K1},@function")
    e.label(K1)
    e("s_cmp_ge_u32 s2, 256")
    e("s_cbranch_scc1 K1_END")
    e("s_load_dwordx16 s[40:55], s[0:1], 0")
    e("s_load_dwordx2 s[56:57], s[0:1], 64")
    e("s_load_dwordx2 s[58:59], s[0:1], 96")
    stamp(e, o, 0)
    e("s_and_b32 s60, s2, 7" if not o['stamps'] else "s_and_b32 s84, s2, 7")
    tj = 60 if not o['stamps'] else 84
    J, I, BLK, B, H0, TMP = tj, tj + 1, tj + 2, tj + 3, tj + 4, tj + 5
    e(f"s_lshr_b32 s{I}, s2, 3")
    e(f"s_lshr_b32 s{BLK}, s{J}, 2")
    e(f"s_and_b32 s{H0}, s{J}, 3")
    e(f"s_lshl_b32 s{H0}, s{H0}, 3")
    e(f"s_and_b32 s{TMP}, s{I}, 3")
    e(f"s_lshl_b32 s{TMP}, s{TMP}, 1")
    e(f"s_add_u32 s{H0}, s{H0}, s{TMP}")
    e(f"s_lshr_b32 s{B}, s{I}, 2")
    e(f"v_lshrrev_b32 v{T(0)}, 6, v0")
    e(f"v_and_b32 v{LANE}, 63, v0")
    e(f"v_readfirstlane_b32 s{sWave}, v{T(0)}")
    e("s_waitcnt lgkmcnt(0)")
    e(f"s_cmp_eq_u32 s{BLK}, 0")
    e("s_cselect_b32 s40, s40, s50"); e("s_cselect_b32 s41, s41, s51")
    e("s_cselect_b32 s42, s42, s52"); e("s_cselect_b32 s43, s43, s53")
    e("s_cselect_b32 s44, s44, s54"); e("s_cselect_b32 s45, s45, s55")
    e("s_cselect_b32 s46, s46, s56"); e("s_cselect_b32 s47, s47, s57")
    e(f"s_mul_i32 s{TMP}, s{B}, 327680")
    e(f"s_add_u32 s{sX}, s40, s{TMP}"); e(f"s_addc_u32 s{sX+1}, s41, 0")
    e(f"s_mov_b32 s{sX+2}, 327680"); e(f"s_mov_b32 s{sX+3}, 0x20000")
    e(f"s_lshl_b32 s{TMP}, s{H0}, 8")
    e(f"s_add_u32 s{sW}, s46, s{TMP}"); e(f"s_addc_u32 s{sW+1}, s47, 0")
    e(f"s_sub_u32 s{sW+2}, {640*8192}, s{TMP}"); e(f"s_mov_b32 s{sW+3}, 0x20000")
    e(f"s_lshl_b32 s{TMP}, s{B}, 5")
    e(f"s_add_u32 s{TMP}, s{TMP}, s{H0}")
    e(f"s_lshl_b32 s{TMP}, s{TMP}, 18")
    e(f"s_add_u32 s{sK}, s42, s{TMP}"); e(f"s_addc_u32 s{sK+1}, s43, 0")
    e(f"s_mov_b32 s{sK+2}, 524288"); e(f"s_mov_b32 s{sK+3}, 0x20000")
    e(f"s_add_u32 s{sV}, s44, s{TMP}"); e(f"s_addc_u32 s{sV+1}, s45, 0")
    e(f"s_mov_b32 s{sV+2}, 524288"); e(f"s_mov_b32 s{sV+3}, 0x20000")
    e(f"s_lshl_b32 s{TMP}, s{BLK}, 3")
    e(f"s_add_u32 s{TMP}, s{TMP}, s{B}")
    e(f"s_lshl_b32 s{TMP}, s{TMP}, 21")
    e(f"s_add_u32 s{sO}, s58, s{TMP}"); e(f"s_addc_u32 s{sO+1}, s59, 0")
    e(f"s_mov_b32 s{sO+2}, {2<<20}"); e(f"s_mov_b32 s{sO+3}, 0x20000")
    e(f"s_lshl_b32 s{sOo}, s{H0}, 14")
    if o['stamps']:
        e(f"s_add_u32 s{sDbg}, s58, {64<<20}"); e(f"s_addc_u32 s{sDbg+1}, s59, 0")
        e(f"s_mov_b32 s{sDbg+2}, {1<<20}"); e(f"s_mov_b32 s{sDbg+3}, 0x20000")
    e(f"s_lshl_b32 s{sW2k}, s{sWave}, 11")
    e(f"s_lshl_b32 s{sW4k}, s{sWave}, 12")
    e(f"s_mov_b32 s{sC}, 0x3e0293ee")
    L = LANE
    t0, t1, t2, t3 = T(0), T(1), T(2), T(3)
    e(f"v_lshrrev_b32 v{t0}, 2, v{L}")
    e(f"s_lshl_b32 s{TMP}, s{sWave}, 6")
    e(f"v_add_u32 v{t0}, s{TMP}, v{t0}")
    e(f"v_mul_u32_u24 v{t0}, 1280, v{t0}")
    e(f"v_and_b32 v{t1}, 3, v{L}")
    e(f"v_lshrrev_b32 v{t2}, 4, v{L}")
    e(f"v_xor_b32 v{t1}, v{t1}, v{t2}")
    e(f"v_lshlrev_b32 v{t1}, 4, v{t1}")
    e(f"v_add_u32 v{XD(0)}, v{t0}, v{t1}")
    for k in range(1, 4):
        e(f"v_add_u32 v{XD(k)}, {k*(20480-1024)}, v{XD(0)}")
    e(f"v_lshrrev_b32 v{t0}, 5, v{L}")
    e(f"v_and_b32 v{t1}, 31, v{L}")
    e(f"s_lshl_b32 s{TMP}, s{sWave}, 3")
    for k in range(4):
        e(f"v_add_u32 v{t2}, {2*k}, v{t0}")
        e(f"v_and_b32 v{t3}, 3, v{t2}")
        e(f"v_lshlrev_b32 v{t3}, 2, v{t3}")
        e(f"v_xor_b32 v{t3}, v{t3}, v{t1}")
        e(f"v_lshlrev_b32 v{t3}, 4, v{t3}")
        e(f"v_add_u32 v{t2}, s{TMP}, v{t2}")
        e(f"v_lshlrev_b32 v{t2}, 13, v{t2}")
        e(f"v_add_u32 v{t2}, v{t2}, v{t3}")
        e(f"v_subrev_u32 v{WD(k)}, {k*1024}, v{t2}")
    def q_dma(bufbase_sgpr=None, bufconst=None):
        f = []
        f.append(f"s_mov_b32 m0, s{sQd}")
        f.append("s_nop 0")
        for k in range(4):
            f.append(f"buffer_load_dwordx4 v{XD(k)}, {s(sX,4)}, s{sXo} offen offset:{k*1024} lds")
        f.append(f"s_add_u32 m0, s{sQd}, 16384")
        f.append(f"s_add_u32 s{sXo}, s{sXo}, 64")
        for k in range(4):
            f.append(f"buffer_load_dwordx4 v{WD(k)}, {s(sW,4)}, s{sWo} offen offset:{k*1024} lds")
        f.append(f"s_add_u32 s{sWo}, s{sWo}, {32*8192}")
        return f
    e(f"s_mov_b32 s{sXo}, 0"); e(f"s_mov_b32 s{sWo}, 0")
    e(f"s_mov_b32 s{sQd}, s{sW4k}")
    if not o['skip_q']:
        for st in range(5):
            for x in q_dma(): e(x)
            e(f"s_add_u32 s{sQd}, s{sQd}, 32768")
    e(f"s_mov_b32 s{sQd}, s{sW4k}")
    e(f"v_lshrrev_b32 v{t0}, 4, v{L}")
    e(f"v_and_b32 v{t1}, 15, v{L}")
    e(f"s_lshl_b32 s{TMP}, s{sWave}, 3")
    e(f"v_add_u32 v{t2}, s{TMP}, v{t0}")
    for k in range(2):
        e(f"v_add_u32 v{t3}, {4*k}, v{t2}")
        e(f"v_and_b32 v{t3}, 15, v{t3}")
        e(f"v_xor_b32 v{t3}, v{t3}, v{t1}")
        e(f"v_lshlrev_b32 v{t3}, 4, v{t3}")
        e(f"v_lshl_add_u32 v{KD(k)}, v{t2}, 8, v{t3}")
        e(f"v_add_u32 v{KD(k)}, 16384, v{KD(k)}")
    e(f"v_lshlrev_b32 v{t3}, 2, v{t0}")
    e(f"v_xor_b32 v{t3}, v{t3}, v{t1}")
    e(f"v_lshlrev_b32 v{t3}, 4, v{t3}")
    e(f"v_lshl_add_u32 v{VD}, v{t2}, 8, v{t3}")
    e(f"v_and_b32 v{t0}, 31, v{L}")
    e(f"v_lshrrev_b32 v{t1}, 5, v{L}")
    e(f"v_and_b32 v{t2}, 15, v{L}")
    e(f"v_xor_b32 v{t2}, v{t2}, v{t1}")
    e(f"v_lshlrev_b32 v{t2}, 4, v{t2}")
    e(f"v_lshl_add_u32 v{t2}, v{t0}, 8, v{t2}")
    for k in range(8):
        e(f"v_xor_b32 v{t3}, {k<<5}, v{t2}")
        e(f"v_subrev_u32 v{KAB(k)}, s{sW2k}, v{t3}")
    e(f"v_bfe_u32 v{t0}, v{L}, 2, 2")
    e(f"v_lshrrev_b32 v{t1}, 5, v{L}")
    e(f"v_lshl_add_u32 v{t1}, v{t1}, 2, v{t0}")
    e(f"v_lshlrev_b32 v{t1}, 8, v{t1}")
    e(f"v_bfe_u32 v{t2}, v{L}, 4, 1")
    e(f"v_and_b32 v{t3}, 3, v{L}")
    e(f"v_lshl_add_u32 v{t2}, v{t2}, 2, v{t3}")
    e(f"v_lshl_add_u32 v{t1}, v{t2}, 3, v{t1}")
    e(f"v_add_u32 v{t1}, 16384, v{t1}")
    e(f"v_subrev_u32 v{t1}, s{sW2k}, v{t1}")
    for k in range(4):
        e(f"v_xor_b32 v{t2}, {k}, v{t0}")
        e(f"v_lshl_add_u32 v{VAB(k)}, v{t2}, 6, v{t1}")
    e(f"v_and_b32 v{t0}, 31, v{L}")
    e(f"v_lshlrev_b32 v{t0}, 6, v{t0}")
    e(f"v_add_u32 v{t0}, s{sW4k}, v{t0}")
    e(f"v_lshrrev_b32 v{t1}, 5, v{L}")
    e(f"v_bfe_u32 v{t2}, v{L}, 2, 2")
    e(f"v_xor_b32 v{t1}, v{t1}, v{t2}")
    e(f"v_lshl_add_u32 v{XAB(0)}, v{t1}, 4, v{t0}")
    e(f"v_xor_b32 v{XAB(1)}, 32, v{XAB(0)}")
    e(f"v_bfe_u32 v{t0}, v{L}, 2, 2")
    e(f"v_lshrrev_b32 v{t1}, 5, v{L}")
    e(f"v_lshl_add_u32 v{t1}, v{t1}, 3, v{t0}")
    e(f"v_lshlrev_b32 v{t1}, 9, v{t1}")
    e(f"v_bfe_u32 v{t2}, v{L}, 4, 1")
    e(f"v_lshl_add_u32 v{t1}, v{t2}, 5, v{t1}")
    e(f"v_and_b32 v{t2}, 1, v{L}")
    e(f"v_lshl_add_u32 v{t1}, v{t2}, 4, v{t1}")
    e(f"v_bfe_u32 v{t2}, v{L}, 1, 1")
    e(f"v_lshl_add_u32 v{t1}, v{t2}, 3, v{t1}")
    e(f"v_add_u32 v{t1}, 16384, v{t1}")
    for k in range(4):
        e(f"v_xor_b32 v{t2}, {k}, v{t0}")
        e(f"v_lshl_add_u32 v{WAB(k)}, v{t2}, 6, v{t1}")
    e(f"s_lshl_b32 s{TMP}, s{sWave}, 19")
    e(f"v_lshlrev_b32 v{OD}, 4, v{L}")
    e(f"v_add_u32 v{OD}, s{TMP}, v{OD}")
    for i in range(128):
        e(f"v_mov_b32 v{i}, 0")
        e(f"v_accvgpr_write_b32 a{i}, 0")

    def q_reads(n_set, ksp):
        f = []
        for qt in range(2):
            f.append(lambda qt=qt: e.lds(f"ds_read_b128 {a(XF(n_set,qt),4)}, v{XA(ksp)} offset:{qt*2048}", ('x', n_set, qt)))
        for d8 in range(8):
            for sec in range(2):
                off = (d8 // 4) * 256 + ksp * 8192 + sec * 2048
                f.append(lambda d8=d8, sec=sec, off=off: e.lds(f"ds_read_b64_tr_b16 {a(WF(n_set,d8)+2*sec,2)}, v{WA(d8%4)} offset:{off}", ('w', n_set, d8, sec)))
        return f
    def q_mfmas(n_set):
        m = []
        for d8 in range(8):
            for qt in range(2):
                def f(d8=d8, qt=qt):
                    if qt == 0 and d8 % 2 == 0:
                        e.need([('x', n_set, 0), ('x', n_set, 1), ('w', n_set, d8, 1), ('w', n_set, d8 + 1, 1)])
                    acc = v(O_(d8 % 4, qt), 16) if d8 < 4 else a(O_(d8 % 4, qt), 16)
                    e(f"{MF32} {acc}, {a(WF(n_set,d8),4)}, {a(XF(n_set,qt),4)}, {acc}")
                m.append(f)
        return m
    def q_addr_update():
        f = []
        for k in range(2): f.append(f"v_add_u32 v{XA(k)}, s{sQr}, v{XAB(k)}")
        for k in range(4): f.append(f"v_add_u32 v{WA(k)}, s{sQr}, v{WAB(k)}")
        return f
    def spread(items, gaps):
        d = {}
        n = len(items)
        for i, it in enumerate(items):
            g = gaps[i * len(gaps) // n]
            d.setdefault(g, []).append(it)
        return d
    def merge(*ds):
        out = {}
        for d in ds:
            for k, vv in d.items():
                out.setdefault(k, []).extend(vv)
        return out
    def kv_dma(which, tile_sub, pb, soff):
        if which == 'K':
            return [f"s_add_u32 m0, s{pb}, {tile_sub*8192}", None,
                    f"buffer_load_dwordx4 v{KD(0)}, {s(sK,4)}, s{soff} offen{nt} lds",
                    f"buffer_load_dwordx4 v{KD(1)}, {s(sK,4)}, s{soff} offen offset:1024{nt} lds"]
        return [f"s_add_u32 m0, s{pb}, {16384+tile_sub*8192}", None,
                f"buffer_load_dwordx4 v{VD}, {s(sV,4)}, s{soff} offen{nt} lds",
                f"buffer_load_dwordx4 v{VD}, {s(sV,4)}, s{soff} offen offset:1024{nt} lds"]

    def q_stage(dma, vm, last=False):
        rd = q_reads(1, 1)
        interleave(e, q_mfmas(0), spread(rd, list(range(0, 12))))
        e(f"s_waitcnt vmcnt({vm}) lgkmcnt(0)"); e.lgkm0()
        e("s_barrier")
        fill = {}
        if not last:
            upd = [f"s_add_u32 s{sQr}, s{sQr}, 32768", f"s_cmp_ge_u32 s{sQr}, {5*32768}", f"s_cselect_b32 s{sQr}, 0, s{sQr}"] + q_addr_update()
            rd = q_reads(0, 0)
            fill = merge({0: upd[:6], 1: upd[6:]}, spread(rd, list(range(2, 13))))
        fill = merge(fill, spread(dma, list(range(3, 16))) if dma else {})
        interleave(e, q_mfmas(1), fill)

    stamp(e, o, 1)
    if not o['skip_q']:
        e(f"s_mov_b32 s{sQr}, 0")
        for x in q_addr_update(): e(x)
        e("s_waitcnt vmcnt(32)")
        e("s_barrier")
        for x in q_reads(0, 0): x()
        e(f"s_mov_b32 s{sCnt}, 15")
        e.label("K1_QLOOP")
        save = (e.lds_issued, e.lds_done, dict(e.tag))
        qd = q_dma() + [f"s_add_u32 s{sQd}, s{sQd}, 32768", f"s_cmp_ge_u32 s{sQd}, {5*32768}", f"s_cselect_b32 s{sT(0)}, {5*32768}, 0", f"s_sub_u32 s{sQd}, s{sQd}, s{sT(0)}"]
        qd = [x for x in qd if x != "s_nop 0"]
        qd.insert(1, "s_nop 0")
        q_stage(qd, 24)
        e(f"s_sub_u32 s{sCnt}, s{sCnt}, 1")
        e(f"s_cmp_lg_u32 s{sCnt}, 0")
        e("s_cbranch_scc1 K1_QLOOP")
    e(f"s_mov_b32 s{sT(1)}, s{sW2k}")
    def prefill(j):
        f = []
        for sub in range(2):
            tile = 2 * j + sub
            f.append(f"s_mov_b32 s{sT(2)}, {tile*8192}")
            kd = kv_dma('K', sub, sT(1), sT(2))
            f += [kd[0], "s_nop 0",
                  f"buffer_load_dwordx4 v{T(4)}, {s(sK,4)}, s{sT(2)} offen{nt} lds",
                  f"buffer_load_dwordx4 v{T(5)}, {s(sK,4)}, s{sT(2)} offen offset:1024{nt} lds"]
        if j < 3:
            for sub in range(2):
                tile = 2 * j + sub
                f.append(f"s_mov_b32 s{sT(2)}, {tile*8192}")
                vd = kv_dma('V', sub, sT(1), sT(2))
                f += [vd[0], "s_nop 0", vd[2], vd[3]]
        f.append(f"s_add_u32 s{sT(1)}, s{sT(1)}, 32768")
        return f
    e(f"v_subrev_u32 v{T(4)}, 16384, v{KD(0)}")
    e(f"v_subrev_u32 v{T(5)}, 16384, v{KD(1)}")
    if not o['skip_q']:
        q_stage(prefill(0), 24)
        q_stage(prefill(1), 24)
        q_stage(prefill(2), 24)
        q_stage(prefill(3), 24)
        q_stage([], 63, last=True)
    else:
        for j in range(4):
            for x in prefill(j): e(x)
    stamp(e, o, 2)
    e("s_nop 15")
    if not o['skip_q']:
        for dtl in range(4):
            for qt in range(2):
                b = O_(dtl, qt)
                for i in range(16):
                    e(f"v_mul_f32 v{b+i}, s{sC}, v{b+i}")
                for sx in range(2):
                    for jj in range(4):
                        e(f"v_cvt_pk_bf16_f32 v{QW(qt, dtl*2+sx)+jj}, v{b+sx*8+2*jj}, v{b+sx*8+2*jj+1}")
        for dtl in range(4):
            for qt in range(2):
                b = O_(dtl, qt)
                for i in range(16):
                    e(f"v_accvgpr_read_b32 v{i}, a{b+i}")
                for i in range(16):
                    e(f"v_mul_f32 v{i}, s{sC}, v{i}")
                for jj in range(8):
                    e(f"v_cvt_pk_bf16_f32 v{16+jj}, v{2*jj}, v{2*jj+1}")
                for jj in range(8):
                    e(f"v_accvgpr_write_b32 a{QP(qt, dtl*2)+jj}, v{16+jj}")
    else:
        e(f"v_lshlrev_b32 v{T(0)}, 4, v{LANE}")
        for i in range(16):
            e(f"s_mov_b32 s{sT(2)}, {i*1024}")
            e(f"buffer_load_dwordx4 {v(128+4*i,4)}, v{T(0)}, {s(sV,4)}, s{sT(2)} offen")
            e(f"buffer_load_dwordx4 {a(128+4*i,4)}, v{T(0)}, {s(sV,4)}, s{sT(2)} offen")
        e("s_waitcnt vmcnt(0)")
    e(f"s_add_u32 s{sPB(0)}, s{sW2k}, {3*32768}")
    e(f"s_mov_b32 s{sPB(1)}, s{sW2k}")
    e(f"s_add_u32 s{sPB(2)}, s{sW2k}, {1*32768}")
    e(f"s_add_u32 s{sPB(3)}, s{sW2k}, {2*32768}")
    e(f"s_mov_b32 s{sKV}, {6*8192}")
    e(f"s_mov_b32 s{sHead}, 0")
    e("s_waitcnt vmcnt(24)")
    e("s_barrier")
    stamp(e, o, 3)

    LA = o['la']
    def k_read(g, sub):
        if o['no_lds']: return lambda: e.tag.__setitem__(('k', g), 0)
        return lambda: e.lds(f"ds_read_b128 {a(KF(g),4)}, v{KA(g)} offset:{sub*8192}", ('k', g))
    def v_read(g, sub):
        dt, sx = g // 2, g % 2
        if o['no_lds']: return [lambda: e.tag.__setitem__(('v', g), 0)]
        return [lambda sec=sec: e.lds(f"ds_read_b64_tr_b16 {a(VF(g)+2*sec,2)}, v{VA(dt)} offset:{sub*8192+sx*4096+sec*2048}", ('v', g)) for sec in range(2)]
    def qk(g, qt, p, c0=None):
        d = v(S_(p, qt), 16)
        c = d if g else (c0 if c0 is not None else v(CI(qt), 16))
        return f"{MF32} {d}, {a(KF(g),4)}, {v(QW(qt,g),4)}, {c}"
    def pv(g, qt, p, first=False):
        dt, sx = g // 2, g % 2
        d = a(O_(dt, qt), 16)
        c = "0" if (first and sx == 0) else d
        return f"{MF32} {d}, {a(VF(g),4)}, {v(P_(p,qt,sx),4)}, {c}"
    def sm_exp(p, k): return f"v_exp_f32 v{32*p+k}, v{32*p+k}"
    def sm_add(p, k): return f"v_add_f32 v{L_(k//16)}, v{L_(k//16)}, v{32*p+k}"
    def sm_cvt(p, k): return f"v_cvt_pk_bf16_f32 v{96+16*p+k//2}, v{32*p+k}, v{32*p+k+1}"

    def iteration(par, do_qk=True, do_pv=True, first_pv=False, carry=True, rd_lo=(1, 1), rd_hi=(1, 1), upd=True):
        p = par
        sub_lo = 0 if par == 1 else 1
        sub_hi = 1 - sub_lo
        mf = []
        for g in range(8):
            ms = []
            if do_qk: ms += [qk(g, 0, 1 - p), qk(g, 1, 1 - p)]
            if do_pv: ms += [pv(g, 0, 1 - p, first_pv), pv(g, 1, 1 - p, first_pv)]
            def first(ms=ms, g=g):
                if g == 4:
                    tags = []
                    if do_qk: tags += [('k', 4), ('k', 5)]
                    if do_pv: tags += [('v', 4), ('v', 5)]
                    if o['no_bar']:
                        e.need(tags)
                    else:
                        e.need(tags, extra="vmcnt(18)")
                        e("s_barrier")
                elif g % 2 == 0:
                    tags = []
                    if do_qk: tags += [('k', g), ('k', g + 1)]
                    if do_pv: tags += [('v', g), ('v', g + 1)]
                    e.need(tags)
                e(ms[0])
            mf += [first] + ms[1:]
        per = len(mf) // 8
        ng = len(mf)
        fill = {i: [] for i in range(ng)}
        if not o['no_valu']:
            if carry:
                fill[0] += [sm_add(1 - p, 31), sm_cvt(1 - p, 30)]
            for k in range(32):
                gp = k * ng // 32
                fill[gp].append(sm_exp(p, k))
                if k >= 1: fill[gp].append(sm_add(p, k - 1))
                if k >= 2 and k % 2 == 0: fill[gp].append(sm_cvt(p, k - 2))
        for g in range(8):
            rds = []
            fr = (g + 4) % 8
            if g < 4:
                if rd_lo[0]: rds.append(k_read(fr, sub_lo))
                if rd_lo[1]: rds += v_read(fr, sub_lo)
            else:
                if rd_hi[0]: rds.append(k_read(fr, sub_hi))
                if rd_hi[1]: rds += v_read(fr, sub_hi)
            for n, r in enumerate(rds):
                fill[g * per + (n + 1) % per].append(r)
        if par == 0 and upd:
            lo = [f"v_add_u32 v{KA(k)}, s{sPB(2)}, v{KAB(k)}" for k in range(4)] + [f"v_add_u32 v{VA(k)}, s{sPB(1)}, v{VAB(k)}" for k in range(2)]
            hi = [f"v_add_u32 v{KA(k)}, s{sPB(2)}, v{KAB(k)}" for k in range(4, 8)] + [f"v_add_u32 v{VA(k)}, s{sPB(1)}, v{VAB(k)}" for k in range(2, 4)]
            for n, x in enumerate(lo): fill[(n * 4 * per) // 6].append(x)
            for n, x in enumerate(hi): fill[4 * per + (n * 4 * per) // 6].append(x)
        if not o['no_dma']:
            if par == 1:
                kd = kv_dma('K', 1, sPB(0), sKV); vd = kv_dma('V', 1, sPB(3), sKV)
            else:
                kd = kv_dma('K', 0, sPB(1), sKV); vd = kv_dma('V', 0, sPB(0), sKV)
            gaps = o['dma_gaps'] or [17, 21, 25, 29]
            gaps = [x * ng // 32 for x in gaps]
            fill[gaps[0] - 1].append(kd[0]); fill[gaps[0]].append(kd[2]); fill[gaps[1]].append(kd[3])
            fill[gaps[2] - 1].append(vd[0]); fill[gaps[2]].append(vd[2]); fill[gaps[3]].append(vd[3])
            fill[ng - 1].append(f"s_add_u32 s{sKV}, s{sKV}, 8192")
        if par == 0:
            fill[ng - 1] += [f"s_mov_b32 s{sT(0)}, s{sPB(0)}", f"s_mov_b32 s{sPB(0)}, s{sPB(1)}", f"s_mov_b32 s{sPB(1)}, s{sPB(2)}",
                             f"s_mov_b32 s{sPB(2)}, s{sPB(3)}", f"s_mov_b32 s{sPB(3)}, s{sT(0)}"]
        interleave(e, mf, fill)

    e.label("K1_HEAD")
    for k in range(8): e(f"v_add_u32 v{KA(k)}, s{sPB(1)}, v{KAB(k)}")
    e(f"v_mov_b32 v{L_(0)}, 0"); e(f"v_mov_b32 v{L_(1)}, 0")
    for g in range(8): k_read(g, 0)()
    mf = []
    for g in range(8):
        def first(g=g):
            e.need([('k', g)])
            e(qk(g, 0, 0, c0="0"))
        mf += [first, qk(g, 1, 0, c0="0")]
    fill = {}
    for g in range(4):
        fill[2 * (g + 4) + 1] = [k_read(g, 1)]
    interleave(e, mf, fill)
    e("s_nop 10")
    for qt in range(2):
        b = S_(0, qt); m = T(qt * 2); m2 = T(qt * 2 + 1)
        e(f"v_max3_f32 v{m}, v{b}, v{b+1}, v{b+2}")
        for i in range(3, 15, 2):
            e(f"v_max3_f32 v{m}, v{m}, v{b+i}, v{b+i+1}")
        e(f"v_max_f32 v{m}, v{m}, v{b+15}")
        e(f"v_mov_b32 v{m2}, v{m}")
    e("s_nop 1")
    for qt in range(2):
        e(f"v_permlane32_swap_b32 v{T(qt*2)}, v{T(qt*2+1)}")
    e("s_nop 1")
    for qt in range(2):
        m = T(qt * 2); m2 = T(qt * 2 + 1)
        e(f"v_max_f32 v{m}, v{m}, v{m2}")
        e(f"v_sub_f32 v{m}, 0, v{m}")
    for qt in range(2):
        for i in range(16): e(f"v_mov_b32 v{CI(qt)+i}, v{T(qt*2)}")
    for qt in range(2):
        for i in range(16): e(f"v_add_f32 v{S_(0,qt)+i}, v{S_(0,qt)+i}, v{T(qt*2)}")
    stamp(e, o, 4)
    iteration(0, do_pv=False, carry=False, rd_lo=(1, 0))
    iteration(1, first_pv=True)
    iteration(0)
    e(f"s_mov_b32 s{sCnt}, 14")
    e.label("K1_ALOOP")
    st0 = (e.lds_issued - e.lds_done, {k: e.lds_issued - x for k, x in e.tag.items()})
    iteration(1)
    iteration(0)
    st1 = (e.lds_issued - e.lds_done, {k: e.lds_issued - x for k, x in e.tag.items() if k[0] in 'kv'})
    assert st0[0] == st1[0] and all(st0[1][k] == x for k, x in st1[1].items()), (st0, st1)
    e(f"s_sub_u32 s{sCnt}, s{sCnt}, 1")
    e(f"s_cmp_lg_u32 s{sCnt}, 0")
    e("s_cbranch_scc1 K1_ALOOP")
    iteration(1, do_qk=False, rd_lo=(0, 1), rd_hi=(0, 1))
    if not o['no_valu']:
        e(sm_add(1, 31)); e(sm_cvt(1, 30))
    for g in range(4, 8):
        for r in v_read(g, 1): r()
    for g in range(8):
        e.need([('v', g)])
        e(pv(g, 0, 1)); e(pv(g, 1, 1))
    stamp(e, o, 5)
    for qt in range(2):
        e(f"v_mov_b32 v{T(qt)}, v{L_(qt)}")
    e("s_nop 1")
    for qt in range(2):
        e(f"v_permlane32_swap_b32 v{L_(qt)}, v{T(qt)}")
    e("s_nop 1")
    for qt in range(2):
        e(f"v_add_f32 v{L_(qt)}, v{L_(qt)}, v{T(qt)}")
    for qt in range(2):
        e(f"v_rcp_f32 v{L_(qt)}, v{L_(qt)}")
    e("s_nop 7")
    n = 0
    for dt in range(4):
        for qt in range(2):
            base = 32 * (n % 2); n += 1
            for i in range(16): e(f"v_accvgpr_read_b32 v{base+i}, a{O_(dt,qt)+i}")
            for i in range(16): e(f"v_mul_f32 v{base+i}, v{base+i}, v{L_(qt)}")
            for i in range(8): e(f"v_cvt_pk_bf16_f32 v{base+16+i}, v{base+2*i}, v{base+2*i+1}")
            if qt == 0:
                e(f"s_add_u32 s{sT(2)}, s{sOo}, {dt*4096}")
            e(f"buffer_store_dwordx4 {v(base+16,4)}, v{OD}, {s(sO,4)}, s{sT(2)} offen offset:{qt*1024}")
            e(f"buffer_store_dwordx4 {v(base+20,4)}, v{OD}, {s(sO,4)}, s{sT(2)} offen offset:{2048+qt*1024}")
    stamp(e, o, 6)
    e(f"s_cmp_lg_u32 s{sHead}, 0")
    e("s_cbranch_scc1 K1_FIN")
    e(f"s_mov_b32 s{sHead}, 1")
    e(f"s_add_u32 s{sOo}, s{sOo}, 16384")
    for i in range(64): e(f"v_accvgpr_read_b32 v{128+i}, a{128+i}")
    e("s_branch K1_HEAD")
    e.label("K1_FIN")
    if o['stamps']:
        stamp(e, o, 7)
        e("s_waitcnt lgkmcnt(0)")
        e(f"s_lshl_b32 s{sT(0)}, s2, 2"); e(f"s_add_u32 s{sT(0)}, s{sT(0)}, s{sWave}"); e(f"s_lshl_b32 s{sT(0)}, s{sT(0)}, 6")
        e(f"v_mov_b32 v{T(0)}, 0")
        for k in range(8):
            e(f"v_mov_b32 v{T(2)}, s{sStamp(k)}"); e(f"v_mov_b32 v{T(3)}, s{sStamp(k)+1}")
            e(f"buffer_store_dwordx2 {v(T(2),2)}, v{T(0)}, {s(sDbg,4)}, s{sT(0)} offen offset:{8*k}")
            e("s_nop 1")
    e.label("K1_END")
    e("s_endpgm")
    return e

HEADER = open("concat_heads__gqa_block_cached__gqa_block_cached__near_ridge.s.ref").read().split("; Override launch")[0]

def build(o):
    from gen2 import gen_k2
    e1 = gen_k1(o)
    errs = check_hazards(e1.lines, "k1")
    out = HEADER
    out += f"; @launch kernel={K1} grid=(256,1,1) block=(256,1,1) lds=163840\n"
    if not o['k1only']:
        out += f"; @launch kernel={K2} grid=(256,1,1) block=(256,1,1) lds=163840\n"
    out += '.amdgcn_target "amdgcn-amd-amdhsa--gfx950"\n.text\n'
    out += e1.text()
    if not o['k1only']:
        e2 = gen_k2(o)
        errs += check_hazards(e2.lines, "k2")
        out += e2.text()
    out += kernel_desc(K1, 512, 256)
    if not o['k1only']:
        out += kernel_desc(K2, 512, 256)
    for x in errs[:40]: print(x, file=sys.stderr)
    return out

if __name__ == "__main__":
    o = dict(DEF)
    path = sys.argv[1]
    for kv in sys.argv[2:]:
        k, val = kv.split("=")
        o[k] = json.loads(val)
    open(path, "w").write(build(o))
```

```python
import re

def v(i, n=1):
    return f"v{i}" if n == 1 else f"v[{i}:{i+n-1}]"
def a(i, n=1):
    return f"a{i}" if n == 1 else f"a[{i}:{i+n-1}]"
def s(i, n=1):
    return f"s{i}" if n == 1 else f"s[{i}:{i+n-1}]"

class R:
    def __init__(self, kind, idx, n=1):
        self.kind, self.idx, self.n = kind, idx, n
    def __str__(self):
        return (v if self.kind == 'v' else a)(self.idx, self.n)
    def sub(self, off, n=1):
        assert off + n <= self.n, (off, n, self.n)
        return R(self.kind, self.idx + off, n)

_REG = re.compile(r"\b([vas])(?:(\d+)|\[(\d+):(\d+)\])")
def regs_of(tok):
    out = set()
    for m in _REG.finditer(tok):
        k = m.group(1)
        if m.group(2) is not None:
            out.add((k, int(m.group(2))))
        else:
            for i in range(int(m.group(3)), int(m.group(4)) + 1):
                out.add((k, i))
    if re.search(r"\bvcc\b", tok): out.add(('s', 'vcc'))
    if re.search(r"\bm0\b", tok): out.add(('s', 'm0'))
    if re.search(r"\bexec\b", tok): out.add(('s', 'exec'))
    return out

TRANS = ("v_exp_f32", "v_log_f32", "v_rcp_f32", "v_rsq_f32", "v_sqrt_f32")

def parse(line):
    t = line.split(";")[0].split("//")[0].strip()
    if not t or t.endswith(":") or t.startswith("."):
        return None
    parts = t.split(None, 1)
    op = parts[0]
    ops = [x.strip() for x in parts[1].split(",")] if len(parts) > 1 else []
    dst, src = set(), set()
    if op.startswith("v_mfma"):
        dst = regs_of(ops[0]); src = regs_of(ops[1]) | regs_of(ops[2]) | regs_of(ops[3])
    elif op.startswith("v_cmp"):
        dst = regs_of(ops[0]); src = set().union(*[regs_of(x) for x in ops[1:]])
    elif op.startswith("v_permlane32_swap") or op.startswith("v_permlane16_swap"):
        dst = regs_of(ops[0]) | regs_of(ops[1]); src = set(dst)
    elif op.startswith("v_fmac") or op.startswith("v_pk_fmac"):
        dst = regs_of(ops[0]); src = set().union(*[regs_of(x) for x in ops])
    elif op.startswith("v_"):
        dst = regs_of(ops[0]); src = set().union(*[regs_of(x) for x in ops[1:]]) if len(ops) > 1 else set()
    elif op.startswith("ds_read"):
        dst = regs_of(ops[0]); src = regs_of(ops[1])
    elif op.startswith("ds_write"):
        src = set().union(*[regs_of(x) for x in ops])
    elif op.startswith("buffer_load") or op.startswith("global_load"):
        if t.rstrip().endswith("lds"):
            src = set().union(*[regs_of(x) for x in ops]) | {('s', 'm0')}
        else:
            dst = regs_of(ops[0]); src = set().union(*[regs_of(x) for x in ops[1:]])
    elif op.startswith("buffer_store") or op.startswith("global_store") or op.startswith("global_atomic") or op.startswith("buffer_atomic"):
        src = set().union(*[regs_of(x) for x in ops])
    elif op.startswith("s_"):
        if op.startswith(("s_cmp", "s_cbranch", "s_branch", "s_waitcnt", "s_barrier", "s_nop", "s_endpgm", "s_setprio", "s_sleep")):
            src = set().union(*[regs_of(x) for x in ops]) if ops else set()
        else:
            dst = regs_of(ops[0]) if ops else set()
            src = set().union(*[regs_of(x) for x in ops[1:]]) if len(ops) > 1 else set()
    return op, dst, src, ops

def mfma_passes(op):
    return 8 if "32x32x16" in op else 4

def check_hazards(lines, name=""):
    ins = []
    for ln in lines:
        p = parse(ln)
        if p: ins.append((ln.strip(), p))
    errs = []
    n = len(ins)
    for i, (txt, (op, dst, src, ops)) in enumerate(ins):
        isvalu = op.startswith("v_") and not op.startswith("v_mfma")
        ismfma = op.startswith("v_mfma")
        states = 0
        for j in range(i + 1, min(n, i + 24)):
            t2, (op2, dst2, src2, ops2) = ins[j]
            v2 = op2.startswith("v_") and not op2.startswith("v_mfma")
            m2 = op2.startswith("v_mfma")
            mem2 = op2.startswith(("ds_", "buffer_", "global_"))
            need = 0
            if isvalu:
                vd = {r for r in dst if r[0] in 'va'}
                sd = {r for r in dst if r[0] == 's'}
                if m2 and (vd & src2): need = max(need, 2)
                if op2.startswith("v_permlane") and (vd & src2): need = max(need, 2)
                if op2.startswith(("v_readfirstlane", "v_readlane")) and (vd & src2): need = max(need, 1)
                if op.split("_e")[0] in TRANS and v2 and (vd & src2) and op2.split("_e")[0] not in TRANS: need = max(need, 1)
                if op.split("_e")[0] in TRANS and v2 and (vd & src2): need = max(need, 1)
                if sd and v2 and (sd & src2): need = max(need, 2)
                if sd and op2.startswith(("buffer_", "global_")) and (sd & src2): need = max(need, 5)
                if "dpp" in t2 and (vd & src2): need = max(need, 2)
            if ismfma:
                ps = mfma_passes(op)
                big = {4: 8, 8: 12}[ps]
                if m2:
                    cA = regs_of(ops2[1]) | regs_of(ops2[2]); cC = regs_of(ops2[3])
                    if dst & cA: need = max(need, big)
                    if dst & cC and not (dst == cC and mfma_passes(op2) == ps): need = max(need, big - 2)
                    if (dst & dst2) and not (dst == dst2): need = max(need, big - 2)
                elif v2:
                    if dst & (src2 | dst2): need = max(need, big)
                    cC = regs_of(ops[3])
                    if cC & dst2: need = max(need, {4: 3, 8: 7}[ps])
                elif mem2:
                    if dst & (src2 | dst2): need = max(need, big)
            if op.startswith("s_") and ('s', 'm0') in dst and ('s', 'm0') in src2 and mem2: need = max(need, 1)
            if op.startswith(("buffer_store_dwordx4", "global_store_dwordx4", "buffer_store_dwordx3", "ds_write_b128")) and op.startswith(("buffer", "global")):
                data = regs_of(ops[0]) if op.startswith("buffer") else regs_of(ops[1])
                if (v2 or mem2) and (data & dst2): need = max(need, 2)
            if need > states:
                errs.append(f"{name}: hazard need {need} have {states}: [{i}] {txt}  ->  [{j}] {t2}")
            if op2 == "s_nop":
                states += int(ops2[0], 0) + 1
            else:
                states += 1
            if states >= 20: break
    return errs

class Emit:
    def __init__(self):
        self.lines = []
        self.lds_issued = 0
        self.lds_done = 0
        self.tag = {}
    def __call__(self, txt):
        self.lines.append("    " + txt)
    def label(self, l):
        self.lines.append(l + ":")
    def c(self, txt):
        self.lines.append("    ; " + txt)
    def raw(self, txt):
        self.lines.append(txt)
    def lds(self, txt, tag=None):
        self.lds_issued += 1
        if tag is not None: self.tag[tag] = self.lds_issued
        self(txt)
    def need(self, tags, extra=""):
        idx = max([self.tag[t] for t in tags], default=0)
        if idx <= self.lds_done:
            if extra: self("s_waitcnt " + extra)
            return
        n = self.lds_issued - idx
        n = min(n, 15)
        self.lds_done = self.lds_issued - n
        self(f"s_waitcnt {extra + ' ' if extra else ''}lgkmcnt({n})")
    vm_issued = 0
    vm_done = 0
    def vm(self, txt, tag=None):
        if "_store_" in txt:
            self(txt); return
        self.vm_issued += 1
        if tag is not None: self.tag[('vm',) + tuple(tag)] = self.vm_issued
        self(txt)
    def vm_count(self, tags):
        idx = max([self.tag[('vm',) + tuple(t)] for t in tags], default=0)
        if idx <= self.vm_done: return None
        n = min(self.vm_issued - idx, 63)
        self.vm_done = self.vm_issued - n
        return n
    def lgkm0(self):
        self.lds_done = self.lds_issued
    def text(self):
        return "\n".join(self.lines) + "\n"

def kernel_desc(name, vgpr, accum, sgpr=102):
    return f""".section .rodata,"a"
.p2align 6
.amdhsa_kernel {name}
  .amdhsa_next_free_vgpr {vgpr}
  .amdhsa_next_free_sgpr {sgpr}
  .amdhsa_accum_offset {accum}
  .amdhsa_group_segment_fixed_size 0
  .amdhsa_kernarg_size 104
  .amdhsa_user_sgpr_count 2
  .amdhsa_user_sgpr_kernarg_segment_ptr 1
  .amdhsa_system_sgpr_workgroup_id_x 1
.end_amdhsa_kernel
"""
```

```python
from asmlib import *
K2 = "oproj_kernel"
MF16 = "v_mfma_f32_16x16x32_bf16"
WP_OFF = 32 << 20

def gen_k2(o):
    from g2 import dump_stamps, emit_list
    e = Emit()
    R = o['k2_r']
    assert R == 4
    sO, sW, sOut, sTc = 4, 8, 12, 16
    sWave, sCnt, sOo, sWo, sLb, sTo, sTstep = 20, 21, 22, 23, 24, 25, 26
    J, I, BLK, B, QH, NB, TMP, TMP2 = 28, 29, 30, 31, 32, 33, 34, 35
    LANE, OD, WD, RA, TO, TD, SD = 1, 2, 3, 4, 5, 6, 7
    t0, t1, t2, t3 = 8, 9, 10, 11
    WF = lambda st, nt: 16 + 20 * st + 4 * nt
    OF = lambda sl, ks, qq: 64 + 32 * sl + 8 * ks + 4 * qq
    ACC = lambda nt, qq: 192 + (nt * 2 + qq) * 4
    e.raw(f".globl {K2}\n.p2align 8\n.type {K2},@function")
    e.label(K2)
    e("s_cmp_ge_u32 s2, 256")
    e("s_cbranch_scc1 K2_END")
    e("s_load_dwordx2 s[44:45], s[0:1], 80")
    e("s_load_dwordx2 s[46:47], s[0:1], 96")
    def stamp(k, real=False):
        if o['stamps']: e(f"{'s_memrealtime' if real else 's_memtime'} {s(60+2*k,2)}")
    stamp(0); stamp(14, True)
    e(f"v_lshrrev_b32 v{t0}, 6, v0")
    e(f"v_and_b32 v{LANE}, 63, v0")
    e(f"v_readfirstlane_b32 s{sWave}, v{t0}")
    e(f"s_and_b32 s{J}, s2, 7")
    e(f"s_lshr_b32 s{I}, s2, 3")
    e(f"s_lshr_b32 s{BLK}, s{J}, 2")
    e(f"s_and_b32 s{B}, s{J}, 3")
    e(f"s_lshl_b32 s{B}, s{B}, 1")
    e(f"s_lshr_b32 s{TMP}, s{I}, 4")
    e(f"s_add_u32 s{B}, s{B}, s{TMP}")
    e(f"s_bfe_u32 s{QH}, s{I}, 0x10003")
    e(f"s_and_b32 s{NB}, s{I}, 7")
    L = LANE
    e(f"v_lshlrev_b32 v{RA}, 4, v{L}")
    e(f"s_lshl_b32 s{TMP}, s{sWave}, 11")
    e(f"v_add_u32 v{OD}, s{TMP}, v{RA}")
    e(f"s_mul_i32 s{sLb}, s{sWave}, 5120")
    e(f"v_add_u32 v{WD}, s{sLb}, v{RA}")
    e(f"s_lshl_b32 s{TMP}, s{BLK}, 3"); e(f"s_add_u32 s{TMP}, s{TMP}, s{B}")
    e(f"s_lshl_b32 s{TMP}, s{TMP}, 1"); e(f"s_add_u32 s{TMP}, s{TMP}, s{QH}")
    e(f"s_lshl_b32 s{TMP}, s{TMP}, 20")
    e(f"s_lshl_b32 s{TMP2}, s{BLK}, 3"); e(f"s_add_u32 s{TMP2}, s{TMP2}, s{NB}")
    e(f"s_mul_i32 s{TMP2}, s{TMP2}, 655360"); e(f"s_add_u32 s{TMP2}, s{TMP2}, {WP_OFF}")
    e("s_waitcnt lgkmcnt(0)")
    e(f"s_add_u32 s{sO}, s46, s{TMP}"); e(f"s_addc_u32 s{sO+1}, s47, 0")
    e(f"s_mov_b32 s{sO+2}, {1<<20}"); e(f"s_mov_b32 s{sO+3}, 0x20000")
    e(f"s_add_u32 s{sW}, s46, s{TMP2}"); e(f"s_addc_u32 s{sW+1}, s47, 0")
    e(f"s_mov_b32 s{sW+2}, 655360"); e(f"s_mov_b32 s{sW+3}, 0x20000")
    e(f"s_mov_b32 s{sOo}, 0"); e(f"s_mov_b32 s{sWo}, 0")
    def dma(slot):
        f = [f"s_add_u32 m0, s{sLb}, {slot*20480}"]
        for p in range(4):
            f.append(lambda p=p: e.vm(f"buffer_load_dwordx4 v{WD}, {s(sW,4)}, s{sWo} offen offset:{p*1024} lds"))
        f += [f"s_add_u32 m0, s{sLb}, {slot*20480+4096}", f"s_add_u32 s{sWo}, s{sWo}, 4096"]
        f.append(lambda: e.vm(f"buffer_load_dwordx4 v{WD}, {s(sW,4)}, s{sWo} offen lds"))
        f.append(f"s_add_u32 s{sWo}, s{sWo}, {20480-4096}")
        return f
    def oload(slot, ks):
        return [lambda qq=qq: e.vm(f"buffer_load_dwordx4 {v(OF(slot,ks,qq),4)}, v{OD}, {s(sO,4)}, s{sOo} offen offset:{qq*1024}") for qq in range(2)] + [f"s_add_u32 s{sOo}, s{sOo}, 8192"]
    tnt = " nt" if o['k2_tnt'] else ""
    def touch():
        if not o['k2_t']: return []
        return [lambda: e.vm(f"buffer_load_dword v{TD}, v{TO}, {s(sTc,4)}, s{sTo} offen{tnt}"), f"s_add_u32 s{sTo}, s{sTo}, s{sTstep}"]
    d0 = dma(0); d0.insert(1, "s_nop 0")
    emit_list(e, d0)
    for ks in range(4): emit_list(e, oload(0, ks))
    e(f"s_cmp_eq_u32 s{sWave}, 0")
    for k in range(3): e(f"s_cselect_b32 s{sTc+k}, s{sO+k}, s{sW+k}")
    e(f"s_mov_b32 s{sTc+3}, 0x20000")
    e(f"s_movk_i32 s{sTstep}, 20480")
    e(f"s_cselect_b32 s{sTstep}, 32768, s{sTstep}")
    e(f"s_cselect_b32 s{TMP2}, 32, 40")
    e(f"s_lshl_b32 s{sTo}, s{NB}, 12")
    e(f"s_lshr_b32 s{TMP}, s{I}, 3"); e(f"s_mul_i32 s{TMP}, s{TMP}, 5120")
    e(f"s_cmp_eq_u32 s{sWave}, 0")
    e(f"s_cselect_b32 s{TMP}, s{sTo}, s{TMP}")
    e(f"s_cmp_gt_u32 s{sWave}, 1")
    e(f"s_cselect_b32 s{TMP2}, 0, s{TMP2}")
    e(f"v_lshlrev_b32 v{TO}, 7, v{L}")
    e(f"v_add_u32 v{TO}, s{TMP}, v{TO}")
    e(f"v_mov_b32 v{t0}, 0x40000000")
    e(f"v_cmp_gt_u32 vcc, s{TMP2}, v{L}")
    e(f"s_mul_i32 s{sTo}, s{sTstep}, {o['k2_t0']}")
    e("s_nop 0")
    e(f"v_cndmask_b32 v{TO}, v{t0}, v{TO}, vcc")
    for i in range(R - 1 + o['k2_t'] - o['k2_t0']): emit_list(e, touch())
    for st in range(1, R - 1):
        d = dma(st); d.insert(1, "s_nop 0")
        emit_list(e, d)
        for ks in range(4): emit_list(e, oload(st, ks))
    for ks in range(3): emit_list(e, oload(R - 1, ks))
    d = dma(R - 1)[:3]; d.insert(1, "s_nop 0")
    emit_list(e, d)
    e(f"s_lshl_b32 s{TMP}, s{B}, 1"); e(f"s_add_u32 s{TMP}, s{TMP}, s{QH}")
    e(f"s_mul_i32 s{TMP}, s{TMP}, {128*2560}")
    e(f"s_mul_i32 s{TMP2}, s{BLK}, 1280"); e(f"s_add_u32 s{TMP}, s{TMP}, s{TMP2}")
    e(f"s_mul_i32 s{TMP2}, s{NB}, 160"); e(f"s_add_u32 s{TMP}, s{TMP}, s{TMP2}")
    e(f"s_add_u32 s{sOut}, s44, s{TMP}"); e(f"s_addc_u32 s{sOut+1}, s45, 0")
    e(f"s_sub_u32 s{sOut+2}, {2048*2560}, s{TMP}"); e(f"s_mov_b32 s{sOut+3}, 0x20000")
    e(f"v_and_b32 v{t0}, 15, v{L}")
    e(f"s_lshl_b32 s{TMP}, s{sWave}, 5")
    e(f"v_add_u32 v{t0}, s{TMP}, v{t0}")
    e(f"v_mul_u32_u24 v{t0}, 2560, v{t0}")
    e(f"v_lshrrev_b32 v{t1}, 4, v{L}")
    e(f"v_lshl_add_u32 v{SD}, v{t1}, 3, v{t0}")
    for i in range(40): e(f"v_mov_b32 v{192+i}, 0")
    def reads(slot, ks, st):
        return [lambda nt=nt: e.lds(f"ds_read_b128 {v(WF(st,nt),4)}, v{RA} offset:{(slot%2)*20480+ks*5120+nt*1024}" if slot < 2 else
                                     f"ds_read_b128 {v(WF(st,nt),4)}, v{RA+8} offset:{(slot%2)*20480+ks*5120+nt*1024}", ('w', st, nt)) for nt in range(5)]
    e(f"v_add_u32 v{RA+8}, 40960, v{RA}")
    per = 13 + (1 if o['k2_t'] else 0)
    stamp(1)
    e(f"s_waitcnt vmcnt({e.vm_issued - 13})")
    e("s_barrier")
    stamp(2)
    emit_list(e, reads(0, 0, 0))
    e(f"s_mov_b32 s{sCnt}, 8")
    e.label("K2_LOOP")
    for t in range(4):
        for ks in range(4):
            st = ks % 2
            fill = {i: [] for i in range(10)}
            if ks == 3:
                vmw = o['k2_vm'] if o['k2_vm'] else (R - 2) * per
                pre = [f"s_waitcnt vmcnt({vmw}) lgkmcnt(0)", "s_barrier"]
                e.lgkm0()
                rd = reads((t + 1) % 4, 0, 1 - st)
            else:
                pre = []
                rd = reads(t, ks + 1, 1 - st)
            vmem = []
            pslot, pks = (t, ks - 1) if ks else ((t - 1) % 4, 3)
            vmem += oload(pslot, pks)
            d = dma((t if ks == 3 else t - 1) % 4)
            if ks == 3: vmem += d[:3]
            elif ks == 0: vmem += d[3:5]
            elif ks == 1: vmem += d[5:]
            elif ks == 2: vmem += touch()
            for n, r in enumerate(rd): fill[1 + n].append(r)
            gaps = [2, 4, 5, 6, 7, 8, 9]
            for n, x in enumerate(vmem): fill[gaps[n * len(gaps) // max(len(vmem), 1)] if len(vmem) <= len(gaps) else min(2 + n, 9)].append(x)
            if t == 3 and ks == 3: fill[9] += [f"s_sub_u32 s{sCnt}, s{sCnt}, 1", f"s_cmp_lg_u32 s{sCnt}, 0"]
            i = 0
            for nt in range(5):
                for qq in range(2):
                    if i == 0:
                        if pre: emit_list(e, pre)
                        else: e.need([('w', st, 0), ('w', st, 1)])
                    if i == 4 and not pre: e.need([('w', st, 4)])
                    acc = v(ACC(nt, qq), 4)
                    e(f"{MF16} {acc}, {v(WF(st,nt),4)}, {v(OF(t,ks,qq),4)}, {acc}")
                    emit_list(e, fill[i])
                    i += 1
    e("s_cbranch_scc1 K2_LOOP")
    stamp(3)
    e("s_waitcnt vmcnt(0)")
    e("s_nop 7")
    e(f"s_mov_b32 s{TMP}, {16*2560}")
    for nt in range(5):
        for qq in range(2):
            ac = ACC(nt, qq)
            e(f"v_cvt_pk_bf16_f32 v{ac}, v{ac}, v{ac+1}")
            e(f"v_cvt_pk_bf16_f32 v{ac+1}, v{ac+2}, v{ac+3}")
            e(f"buffer_store_dwordx2 {v(ac,2)}, v{SD}, {s(sOut,4)}, {'s%d' % TMP if qq else '0'} offen offset:{nt*32}")
    if o['stamps']:
        stamp(4); stamp(15, True)
        dump_stamps(e, sWave, TMP, t0, 96, 46, 65 << 20)
    e.label("K2_END")
    e("s_endpgm")
    return e
```

```python
import sys, json
from asmlib import *

K1 = "attn_kernel"
K2 = "oproj_kernel"
MF32 = "v_mfma_f32_32x32x16_bf16"
MF16 = "v_mfma_f32_16x16x32_bf16"

DEF = dict(stamps=0, nt=1, k1only=0, skip_q=0, no_dma=0, no_bar=0, no_valu=0, no_lds=0, map=0, nb=3, tb_nt=0, ta=1,
           cap=22, dmacap=4, barcap=0, dma_gaps=[19, 27, 3, 11], codepf=1, qtrace=0,
           k2_t=3, k2_tnt=0, k2_r=4, k2_t0=1, k2_vm=0,
           pack=1, ta0=3, late0=200, tbw=[], tbt=[], tb_l=16, tb0=0, qt0=0, ptrace=0, sched=dict(xa=[-1,1,8], xb=[-1,8,16], wa=[0,1,8], bu=[0,9,16], wb=[2,1,10]), pk=[[0,1,2],[4,5,6]], kpre=33)

WP_OFF = 32 << 20
S_ = lambda p, qt: 32 * p + 16 * qt
CI = lambda qt: 64 + 16 * qt
P_ = lambda p, qt, sx: 96 + 16 * p + 8 * qt + 4 * sx
QW = lambda qt, ks: 128 + 32 * qt + 4 * ks
KA, VA0, VA1 = 192, 193, 194
L_ = lambda qt: 196 + qt
KD = lambda e: 198 + e
VD = lambda e: 200 + e
KDP = lambda e: 202 + e
VDP = lambda e: 204 + e
LANE, OD, TA, TB, TD = 206, 207, 208, 209, 210
T = lambda k: 212 + k
XD = lambda e: 228 + e
WD = lambda e: 236 + e
XA = lambda sl, k: 240 + 4 * sl + k
WA = lambda k: 248 + k
PD = lambda p: 128 + p
PA, PO = 133, 134
PF = lambda t: 136 + 4 * t
O_ = lambda dt, qt: (dt * 2 + qt) * 16
QP = lambda qt, ks: 128 + 32 * qt + 4 * ks
KF = lambda g: 192 + 4 * g
VF = lambda g: 224 + 4 * g
XF = lambda st, qt: 128 + 40 * st + 4 * qt
WF = lambda st, d8: 128 + 40 * st + 8 + 4 * d8
sX, sW, sK, sV, sO, sTA, sTB, sWO, sWP = 4, 8, 12, 16, 20, 24, 28, 32, 36
sWave, sWK, sWV, sW4k, sW8k, sCnt, sKV, sHead, sC, sOo, sTAstep, sTAo, sTBo = 40, 41, 42, 43, 44, 45, 46, 47, 48, 49, 50, 51, 52
sT = lambda k: 53 + k
sStamp = lambda k: 60 + 2 * k
sDbg = 92
KT, VT = 8448, 8704
VBASE = 8 * KT
XSLOT = [32768, 131072]
WSLOT = lambda st: 65536 + (st % 4) * 16384

def emit_list(e, items):
    for f in items:
        f() if callable(f) else e(f)

def interleave(e, mf, fill):
    for i, m in enumerate(mf):
        m() if callable(m) else e(m)
        emit_list(e, fill.get(i, []))

def spread(items, gaps):
    d = {}
    n = len(items)
    for i, it in enumerate(items):
        d.setdefault(gaps[i * len(gaps) // n], []).append(it)
    return d

def merge(*ds):
    out = {}
    for d in ds:
        for k, vv in d.items():
            out.setdefault(k, []).extend(vv)
    return out

def dump_stamps(e, wave_sgpr, tmp_s, vt, srd, ws_lo, off):
    e("s_waitcnt lgkmcnt(0)")
    e("s_getreg_b32 s86, hwreg(HW_REG_XCC_ID)"); e("s_getreg_b32 s87, hwreg(HW_REG_HW_ID)")
    e(f"s_add_u32 s{srd}, s{ws_lo}, {off}"); e(f"s_addc_u32 s{srd+1}, s{ws_lo+1}, 0")
    e(f"s_mov_b32 s{srd+2}, {1<<20}"); e(f"s_mov_b32 s{srd+3}, 0x20000")
    e(f"s_lshl_b32 s{tmp_s}, s2, 2"); e(f"s_add_u32 s{tmp_s}, s{tmp_s}, s{wave_sgpr}"); e(f"s_lshl_b32 s{tmp_s}, s{tmp_s}, 7")
    e(f"v_mov_b32 v{vt}, 0")
    for k in range(16):
        e(f"v_mov_b32 v{vt+2}, s{60+2*k}"); e(f"v_mov_b32 v{vt+3}, s{61+2*k}")
        e(f"buffer_store_dwordx2 {v(vt+2,2)}, v{vt}, {s(srd,4)}, s{tmp_s} offen offset:{8*k}")
        e("s_nop 1")

def code_prefetch(e, base, label_end, vt, i_sgpr, st, lane):
    e(f"s_getpc_b64 {s(st,2)}")
    e.label(base)
    e(f"v_and_b32 v{vt}, 15, v{lane}")
    e(f"v_lshlrev_b32 v{vt}, 7, v{vt}")
    e(f"s_lshl_b32 s{st+2}, s{i_sgpr}, 11")
    e(f"v_add_u32 v{vt}, s{st+2}, v{vt}")
    e(f"v_min_u32 v{vt}, {label_end}, v{vt}")
    e.vm(f"global_load_dword v{TD}, v{vt}, {s(st,2)}")

def gen_k1(o):
    e = Emit()
    nt = " nt" if o['nt'] else ""
    def stamp(k):
        if o['stamps'] and not ((o['qtrace'] or o['ptrace']) and k != 0): e(f"s_memtime {s(sStamp(k), 2)}")
    L = LANE
    t0, t1, t2, t3 = T(0), T(1), T(2), T(3)
    J, I, BLK, B, H0, TMP = 96, 97, 98, 99, 100, 101
    e.raw(f".globl {K1}\n.p2align 8\n.type {K1},@function")
    e.label(K1)
    e("s_cmp_ge_u32 s2, 256")
    e("s_cbranch_scc1 K1_END")
    e("s_load_dwordx16 s[64:79], s[0:1], 0")
    e("s_load_dwordx4 s[80:83], s[0:1], 64")
    e("s_load_dwordx2 s[84:85], s[0:1], 96")
    stamp(0)
    if o['stamps']: e(f"s_memrealtime {s(sStamp(14), 2)}")
    e(f"v_lshrrev_b32 v{t0}, 6, v0")
    e(f"v_and_b32 v{L}, 63, v0")
    e(f"v_readfirstlane_b32 s{sWave}, v{t0}")
    e(f"s_and_b32 s{J}, s2, 7")
    e(f"s_lshr_b32 s{I}, s2, 3")
    e(f"s_lshr_b32 s{BLK}, s{J}, 2")
    e(f"s_and_b32 s{J}, s{J}, 3")
    if o['map'] == 0:
        e(f"s_lshl_b32 s{H0}, s{J}, 3"); e(f"s_and_b32 s{TMP}, s{I}, 3"); e(f"s_lshl_b32 s{TMP}, s{TMP}, 1")
        e(f"s_add_u32 s{H0}, s{H0}, s{TMP}"); e(f"s_lshr_b32 s{B}, s{I}, 2")
    else:
        e(f"s_lshl_b32 s{B}, s{J}, 1"); e(f"s_lshr_b32 s{TMP}, s{I}, 4"); e(f"s_add_u32 s{B}, s{B}, s{TMP}")
        e(f"s_and_b32 s{H0}, s{I}, 15"); e(f"s_lshl_b32 s{H0}, s{H0}, 1")
    e(f"s_lshl_b32 s{sW4k}, s{sWave}, 12")
    e(f"s_lshl_b32 s{sW8k}, s{sWave}, 13")
    e(f"v_lshrrev_b32 v{t0}, 3, v{L}")
    e(f"s_lshl_b32 s{TMP}, s{sWave}, 6")
    e(f"v_add_u32 v{t0}, s{TMP}, v{t0}")
    e(f"v_mul_u32_u24 v{t0}, 1280, v{t0}")
    e(f"v_and_b32 v{t1}, 7, v{L}")
    e(f"v_lshrrev_b32 v{t2}, 4, v{L}")
    e(f"v_xor_b32 v{t1}, v{t1}, v{t2}")
    e(f"v_lshl_add_u32 v{XD(0)}, v{t1}, 4, v{t0}")
    e(f"v_xor_b32 v{t1}, 64, v{XD(0)}")
    for k in range(1, 8):
        e(f"v_add_u32 v{XD(k)}, {k*8*1280-(k%4)*1024}, v{XD(0) if k%2==0 else t1}")
    e(f"v_lshrrev_b32 v{t0}, 5, v{L}")
    e(f"v_and_b32 v{t1}, 31, v{L}")
    e(f"v_lshlrev_b32 v{t2}, 2, v{t0}")
    e(f"v_xor_b32 v{t1}, v{t1}, v{t2}")
    e(f"v_lshlrev_b32 v{t1}, 4, v{t1}")
    e(f"s_lshl_b32 s{TMP}, s{sWave}, 3")
    e(f"v_add_u32 v{t0}, s{TMP}, v{t0}")
    e(f"v_lshl_add_u32 v{WD(0)}, v{t0}, 13, v{t1}")
    e(f"v_xor_b32 v{t1}, 128, v{WD(0)}")
    for k in range(1, 4):
        e(f"v_add_u32 v{WD(k)}, {k*2*8192-k*1024}, v{WD(0) if k%2==0 else t1}")
    big = 0x40000000
    e(f"v_mov_b32 v{t3}, {big}")
    if o['map'] == 0:
        e(f"s_and_b32 s{TMP}, s{I}, 3"); e(f"s_lshl_b32 s{TMP}, s{TMP}, 6")
        e(f"v_add_u32 v{t0}, s{TMP}, v{L}"); e(f"v_mul_u32_u24 v{t0}, 1280, v{t0}")
        e(f"v_lshrrev_b32 v{t1}, 2, v{L}"); e(f"s_lshl_b32 s{TMP}, s{B}, 3"); e(f"v_add_u32 v{t1}, s{TMP}, v{t1}")
        e(f"v_lshlrev_b32 v{t1}, 13, v{t1}"); e(f"v_and_b32 v{t2}, 3, v{L}"); e(f"v_lshl_add_u32 v{t1}, v{t2}, 7, v{t1}")
        e(f"v_cmp_gt_u32 vcc, 32, v{L}"); e("s_nop 1"); e(f"v_cndmask_b32 v{t1}, v{t3}, v{t1}, vcc")
        nw = 1
    else:
        e(f"s_and_b32 s{TMP}, s{I}, 15"); e(f"s_lshl_b32 s{TMP}, s{TMP}, 4")
        e(f"v_add_u32 v{t0}, s{TMP}, v{L}"); e(f"v_mul_u32_u24 v{t0}, 1280, v{t0}")
        e(f"v_cmp_gt_u32 vcc, 16, v{L}"); e("s_nop 1"); e(f"v_cndmask_b32 v{t0}, v{t3}, v{t0}, vcc")
        e(f"s_lshr_b32 s{TMP}, s{I}, 4"); e(f"s_lshl_b32 s{TMP}, s{TMP}, 1"); e(f"s_add_u32 s{TMP}, s{TMP}, s{sWave}")
        e(f"s_sub_u32 s{TMP}, s{TMP}, 1"); e(f"s_lshl_b32 s{TMP}, s{TMP}, 4"); e(f"s_and_b32 s{TMP}, s{TMP}, 63")
        e(f"v_lshrrev_b32 v{t1}, 2, v{L}"); e(f"v_add_u32 v{t1}, s{TMP}, v{t1}")
        e(f"v_lshlrev_b32 v{t1}, 13, v{t1}"); e(f"v_and_b32 v{t2}, 3, v{L}"); e(f"v_lshl_add_u32 v{t1}, v{t2}, 7, v{t1}")
        nw = 2
    e(f"s_cmp_eq_u32 s{sWave}, 0"); e("s_cselect_b64 vcc, -1, 0"); e(f"v_cndmask_b32 v{TA}, v{t1}, v{t0}, vcc")
    e(f"s_cmp_gt_u32 s{sWave}, {nw}"); e("s_cselect_b64 vcc, -1, 0"); e(f"v_cndmask_b32 v{TA}, v{TA}, v{t3}, vcc")
    e("s_waitcnt lgkmcnt(0)")
    e(f"s_cmp_eq_u32 s{BLK}, 0")
    e("s_cselect_b32 s64, s64, s74"); e("s_cselect_b32 s65, s65, s75")
    e("s_cselect_b32 s70, s70, s80"); e("s_cselect_b32 s71, s71, s81")
    e("s_cselect_b32 s66, s66, s76"); e("s_cselect_b32 s67, s67, s77")
    e("s_cselect_b32 s68, s68, s78"); e("s_cselect_b32 s69, s69, s79")
    e("s_cselect_b32 s72, s72, s82"); e("s_cselect_b32 s73, s73, s83")
    e(f"s_mul_i32 s{TMP}, s{B}, 327680")
    e(f"s_add_u32 s{sX}, s64, s{TMP}"); e(f"s_addc_u32 s{sX+1}, s65, 0")
    e(f"s_mov_b32 s{sX+2}, 327680"); e(f"s_mov_b32 s{sX+3}, 0x20000")
    e(f"s_lshl_b32 s{TMP}, s{H0}, 8")
    e(f"s_add_u32 s{sW}, s70, s{TMP}"); e(f"s_addc_u32 s{sW+1}, s71, 0")
    e(f"s_sub_u32 s{sW+2}, {640*8192}, s{TMP}"); e(f"s_mov_b32 s{sW+3}, 0x20000")
    e(f"s_cmp_eq_u32 s{sWave}, 0")
    for k in range(3): e(f"s_cselect_b32 s{sTA+k}, s{sX+k}, s{sW+k}")
    e(f"s_mov_b32 s{sTA+3}, 0x20000")
    e(f"s_movk_i32 s{sTAstep}, 128")
    e(f"s_cselect_b32 s{sTAstep}, s{sTAstep}, {64*8192}")
    e(f"s_mov_b32 s{sTAo}, 0")

    def x_dma(D, half):
        f = [f"s_add_u32 m0, s{sW8k}, {XSLOT[D%2]+half*4096}", f"s_mov_b32 s{sT(0)}, {D*128}"]
        for k in range(4):
            f.append(lambda k=k: e.vm(f"buffer_load_dwordx4 v{XD(half*4+k)}, {s(sX,4)}, s{sT(0)} offen offset:{k*1024} lds", ('x', D)))
        return f
    def w_dma(st):
        f = [f"s_add_u32 m0, s{sW4k}, {WSLOT(st)}", f"s_mov_b32 s{sT(1)}, {st*32*8192}"]
        for k in range(4):
            f.append(lambda k=k: e.vm(f"buffer_load_dwordx4 v{WD(k)}, {s(sW,4)}, s{sT(1)} offen offset:{k*1024} lds", ('w', st)))
        return f
    def touch_a():
        if not o['ta']: return []
        return [lambda: e.vm(f"buffer_load_dword v{TD}, v{TA}, {s(sTA,4)}, s{sTAo} offen"), f"s_add_u32 s{sTAo}, s{sTAo}, s{sTAstep}"]
    def touch_b():
        return [lambda: e.vm(f"buffer_load_dword v{TD}, v{TB}, {s(sTB,4)}, s{sTBo} offen" + (" nt" if o['tb_nt'] else "")), f"s_add_u32 s{sTBo}, s{sTBo}, {o['tb_l']*256}"]
    pt = lambda k: e(f"s_memtime {s(sStamp(k), 2)}") if o['ptrace'] else None
    if not o['skip_q']:
        for _ in range(o['ta0']): emit_list(e, touch_a())
    if o['codepf']:
        code_prefetch(e, "K1_PFBASE", "K1_END-K1_PFBASE" if o["k1only"] else "K2_END-K1_PFBASE", t0, I, 56, L)
    e(f"s_lshl_b32 s{TMP}, s{B}, 5"); e(f"s_add_u32 s{TMP}, s{TMP}, s{H0}"); e(f"s_lshl_b32 s{TMP}, s{TMP}, 18")
    e(f"s_add_u32 s{sK}, s66, s{TMP}"); e(f"s_addc_u32 s{sK+1}, s67, 0")
    e(f"s_mov_b32 s{sK+2}, 524288"); e(f"s_mov_b32 s{sK+3}, 0x20000")
    e(f"s_add_u32 s{sV}, s68, s{TMP}"); e(f"s_addc_u32 s{sV+1}, s69, 0")
    e(f"s_mov_b32 s{sV+2}, 524288"); e(f"s_mov_b32 s{sV+3}, 0x20000")
    e(f"s_bitcmp1_b32 s{sWave}, 0")
    e(f"s_cselect_b32 s{sTB}, s{sV}, s{sK}"); e(f"s_cselect_b32 s{sTB+1}, s{sV+1}, s{sK+1}")
    e(f"s_mov_b32 s{sTB+2}, 524288"); e(f"s_mov_b32 s{sTB+3}, 0x20000")
    e(f"s_lshr_b32 s{sTBo}, s{sWave}, 1"); e(f"s_mul_i32 s{sTBo}, s{sTBo}, {o['tb_l']*128}")
    if o['tb0']: e(f"s_add_u32 s{sTBo}, s{sTBo}, {o['tb0']*8192}")
    e(f"v_lshlrev_b32 v{TB}, 7, v{L}")
    e(f"v_cmp_gt_u32 vcc, {o['tb_l']}, v{L}"); e("s_nop 1"); e(f"v_cndmask_b32 v{TB}, v{t3}, v{TB}, vcc")
    e(f"s_lshl_b32 s{TMP}, s{BLK}, 3"); e(f"s_add_u32 s{TMP}, s{TMP}, s{B}"); e(f"s_lshl_b32 s{TMP}, s{TMP}, 21")
    e(f"s_add_u32 s{sO}, s84, s{TMP}"); e(f"s_addc_u32 s{sO+1}, s85, 0")
    e(f"s_mov_b32 s{sO+2}, {2<<20}"); e(f"s_mov_b32 s{sO+3}, 0x20000")
    e(f"s_lshl_b32 s{sOo}, s{H0}, 15")
    e(f"s_lshl_b32 s{TMP}, s{J}, 5"); e(f"s_add_u32 s{TMP}, s{TMP}, s{I}")
    e(f"s_mul_i32 s{sT(2)}, s{TMP}, 40960")
    e(f"s_add_u32 s{sWO}, s72, s{sT(2)}"); e(f"s_addc_u32 s{sWO+1}, s73, 0")
    e(f"s_mov_b32 s{sWO+2}, 40960"); e(f"s_mov_b32 s{sWO+3}, 0x20000")
    e(f"s_mul_i32 s{TMP}, s{TMP}, 5120")
    e(f"s_mul_i32 s{sT(2)}, s{BLK}, 5242880")
    e(f"s_add_u32 s{sT(2)}, s{sT(2)}, {WP_OFF}")
    e(f"s_add_u32 s{sT(2)}, s{sT(2)}, s{TMP}")
    e(f"s_add_u32 s{sWP}, s84, s{sT(2)}"); e(f"s_addc_u32 s{sWP+1}, s85, 0")
    e(f"s_sub_u32 s{sWP+2}, 5242880, s{TMP}"); e(f"s_mov_b32 s{sWP+3}, 0x20000")
    if o['stamps']:
        e(f"s_mov_b64 s[94:95], s[84:85]")
    e(f"s_mul_i32 s{sWK}, s{sWave}, {2*1056}")
    e(f"s_mul_i32 s{sWV}, s{sWave}, {2*1088}"); e(f"s_add_u32 s{sWV}, s{sWV}, {VBASE}")
    e(f"s_mov_b32 s{sC}, 0x3e0293ee")
    e(f"v_and_b32 v{t0}, 31, v{L}")
    e(f"v_lshlrev_b32 v{t0}, 7, v{t0}")
    e(f"v_add_u32 v{t0}, s{sW8k}, v{t0}")
    e(f"v_lshrrev_b32 v{t1}, 5, v{L}")
    e(f"v_bfe_u32 v{t2}, v{L}, 1, 3")
    e(f"v_xor_b32 v{t1}, v{t1}, v{t2}")
    e(f"v_lshl_add_u32 v{t0}, v{t1}, 4, v{t0}")
    for k in range(4):
        e(f"v_xor_b32 v{t1}, {k<<5}, v{t0}")
        for sl in range(2): e(f"v_add_u32 v{XA(sl,k)}, {XSLOT[sl]}, v{t1}")
    e(f"v_bfe_u32 v{t0}, v{L}, 2, 2")
    e(f"v_lshrrev_b32 v{t1}, 5, v{L}")
    e(f"v_lshl_add_u32 v{t1}, v{t1}, 3, v{t0}")
    e(f"v_lshlrev_b32 v{t1}, 9, v{t1}")
    e(f"v_bfe_u32 v{t2}, v{L}, 4, 1")
    e(f"v_lshl_add_u32 v{t1}, v{t2}, 5, v{t1}")
    e(f"v_and_b32 v{t2}, 1, v{L}")
    e(f"v_lshl_add_u32 v{t1}, v{t2}, 4, v{t1}")
    e(f"v_bfe_u32 v{t2}, v{L}, 1, 1")
    e(f"v_lshl_add_u32 v{t1}, v{t2}, 3, v{t1}")
    e(f"v_add_u32 v{t1}, 65536, v{t1}")
    for k in range(4):
        e(f"v_xor_b32 v{t2}, {k}, v{t0}")
        e(f"v_lshl_add_u32 v{WA(k)}, v{t2}, 6, v{t1}")
    late = []
    A = late.append
    A(f"v_bfe_u32 v{t0}, v{L}, 4, 1"); A(f"v_and_b32 v{t1}, 15, v{L}"); A(f"v_xor_b32 v{t1}, v{t1}, v{t0}")
    A(f"v_lshrrev_b32 v{t2}, 5, v{L}"); A(f"v_lshl_add_u32 v{t2}, v{t2}, 2, v{t0}")
    A(f"s_lshl_b32 s{sT(2)}, s{sWave}, 3"); A(f"v_add_u32 v{t2}, s{sT(2)}, v{t2}")
    A(f"v_lshlrev_b32 v{t2}, 8, v{t2}"); A(f"v_lshl_add_u32 v{KDP(0)}, v{t1}, 4, v{t2}")
    A(f"v_add_u32 v{KDP(1)}, 512, v{KDP(0)}")
    A(f"v_add_u32 v{KD(0)}, 24576, v{KDP(0)}"); A(f"v_add_u32 v{KD(1)}, {24576-1056}, v{KDP(1)}")
    A(f"v_lshrrev_b32 v{t0}, 4, v{L}"); A(f"v_lshlrev_b32 v{t0}, 10, v{t0}"); A(f"v_and_b32 v{t1}, 15, v{L}")
    A(f"v_lshl_add_u32 v{t0}, v{t1}, 4, v{t0}")
    A(f"s_lshr_b32 s{sT(2)}, s{sWave}, 1"); A(f"s_lshl_b32 s{sT(2)}, s{sT(2)}, 12")
    A(f"s_and_b32 s{sT(3)}, s{sWave}, 1"); A(f"s_lshl_b32 s{sT(3)}, s{sT(3)}, 9"); A(f"s_add_u32 s{sT(2)}, s{sT(2)}, s{sT(3)}")
    A(f"v_add_u32 v{VDP(0)}, s{sT(2)}, v{t0}"); A(f"v_add_u32 v{VDP(1)}, 256, v{VDP(0)}")
    A(f"v_add_u32 v{VD(0)}, 8192, v{VDP(0)}"); A(f"v_add_u32 v{VD(1)}, {8192-1088}, v{VDP(1)}")
    A(f"v_bfe_u32 v{t0}, v{L}, 3, 2"); A(f"v_bfe_u32 v{t1}, v{L}, 1, 1"); A(f"v_lshl_add_u32 v{t0}, v{t0}, 1, v{t1}")
    A(f"v_mul_u32_u24 v{t0}, 1056, v{t0}")
    A(f"v_bfe_u32 v{t1}, v{L}, 2, 1"); A(f"v_and_b32 v{t2}, 1, v{L}"); A(f"v_lshl_add_u32 v{t1}, v{t1}, 1, v{t2}")
    A(f"v_lshl_add_u32 v{t0}, v{t1}, 8, v{t0}")
    A(f"v_lshrrev_b32 v{t1}, 5, v{L}"); A(f"v_xor_b32 v{t1}, v{t1}, v{t2}"); A(f"v_lshl_add_u32 v{KA}, v{t1}, 4, v{t0}")
    A(f"v_bfe_u32 v{t0}, v{L}, 2, 2"); A(f"v_mul_u32_u24 v{t0}, 1088, v{t0}")
    A(f"v_lshrrev_b32 v{t1}, 5, v{L}"); A(f"v_lshl_add_u32 v{t0}, v{t1}, 8, v{t0}")
    A(f"v_bfe_u32 v{t1}, v{L}, 4, 1"); A(f"v_lshl_add_u32 v{t0}, v{t1}, 5, v{t0}")
    A(f"v_and_b32 v{t1}, 3, v{L}"); A(f"v_lshl_add_u32 v{t0}, v{t1}, 3, v{t0}")
    A(f"v_add_u32 v{VA0}, {VBASE}, v{t0}"); A(f"v_add_u32 v{VA1}, {VBASE+4*VT}, v{t0}")
    A(f"v_bfe_u32 v{t0}, v{L}, 4, 1"); A(f"v_lshlrev_b32 v{t0}, 10, v{t0}")
    A(f"v_lshrrev_b32 v{t1}, 5, v{L}"); A(f"v_lshl_add_u32 v{t0}, v{t1}, 8, v{t0}")
    A(f"v_and_b32 v{t1}, 15, v{L}"); A(f"v_lshl_add_u32 v{t0}, v{t1}, 4, v{t0}")
    A(f"s_lshr_b32 s{sT(2)}, s{sWave}, 1"); A(f"s_lshl_b32 s{sT(2)}, s{sT(2)}, 20")
    A(f"s_and_b32 s{sT(3)}, s{sWave}, 1"); A(f"s_lshl_b32 s{sT(3)}, s{sT(3)}, 12"); A(f"s_add_u32 s{sT(2)}, s{sT(2)}, s{sT(3)}")
    A(f"v_add_u32 v{OD}, s{sT(2)}, v{t0}")
    A(f"s_mul_i32 s{sT(2)}, s{sWave}, {8*1280}")
    for p in range(5):
        A(f"v_add_u32 v{t0}, {p*64}, v{L}"); A(f"v_mul_u32_u24 v{t1}, 1639, v{t0}"); A(f"v_lshrrev_b32 v{t1}, 16, v{t1}")
        A(f"v_mul_u32_u24 v{t2}, {1280-640}, v{t1}"); A(f"v_lshl_add_u32 v{t2}, v{t0}, 4, v{t2}")
        A(f"v_add_u32 v{t2}, s{sT(2)}, v{t2}")
        A(f"v_subrev_u32 v{PD(p)}, {p*1024 if p < 4 else 0}, v{t2}")
    A(f"v_lshrrev_b32 v{t0}, 5, v{L}"); A(f"v_lshlrev_b32 v{t0}, 4, v{t0}")
    A(f"v_bfe_u32 v{t1}, v{L}, 2, 3"); A(f"v_add_u32 v{t0}, v{t0}, v{t1}")
    A(f"v_mul_u32_u24 v{t0}, 640, v{t0}"); A(f"v_and_b32 v{t1}, 3, v{L}"); A(f"v_lshl_add_u32 v{t0}, v{t1}, 3, v{t0}")
    A(f"s_mul_i32 s{sT(2)}, s{sWave}, 160"); A(f"v_add_u32 v{PA}, s{sT(2)}, v{t0}")
    A(f"s_mul_i32 s{sT(2)}, s{sWave}, 655360"); A(f"v_lshlrev_b32 v{t0}, 4, v{L}"); A(f"v_add_u32 v{PO}, s{sT(2)}, v{t0}")

    def pack_dma(ch):
        f = [f"s_mul_i32 s{sT(4)}, s{sWave}, 5120", f"s_mov_b32 m0, s{sT(4)}", f"s_mov_b32 s{sT(5)}, {ch*640}"]
        for p in range(4):
            f.append(lambda p=p: e.vm(f"buffer_load_dwordx4 v{PD(p)}, {s(sWO,4)}, s{sT(5)} offen offset:{p*1024} lds", ('p', ch)))
        f += [f"s_add_u32 m0, s{sT(4)}, 4096", "s_nop 0"]
        f.append(lambda: e.vm(f"buffer_load_dwordx4 v{PD(4)}, {s(sWO,4)}, s{sT(5)} offen lds", ('p', ch)))
        return f
    def pack_read(ch):
        return [lambda t=t, sec=sec: e.lds(f"ds_read_b64_tr_b16 {v(PF(t)+2*sec,2)}, v{PA} offset:{t*32+sec*5120}", ('pf', t)) for t in range(5) for sec in range(2)]
    def pack_store(ch):
        f = [f"s_mov_b32 s{sT(5)}, {ch*4*655360}", f"s_mov_b32 s{sT(4)}, {ch*4*655360+4096}", lambda: e.need([('pf', 4)])]
        for t in range(4):
            f.append(lambda t=t: e.vm(f"buffer_store_dwordx4 {v(PF(t),4)}, v{PO}, {s(sWP,4)}, s{sT(5)} offen offset:{t*1024}"))
        f.append(lambda: e.vm(f"buffer_store_dwordx4 {v(PF(4),4)}, v{PO}, {s(sWP,4)}, s{sT(4)} offen"))
        return f
    def pre(which, tile):
        base, stride, srd, reg = ((sWK, 1056, sK, KDP), (sWV, 1088, sV, VDP))[which == 'V']
        sl = tile * (KT if which == 'K' else VT)
        return [f"s_add_u32 m0, s{base}, {sl}", f"s_mov_b32 s{sT(6)}, {tile*8192}",
                lambda: e.vm(f"buffer_load_dwordx4 v{reg(0)}, {s(srd,4)}, s{sT(6)} offen{nt} lds", (which, tile)),
                f"s_add_u32 m0, s{base}, {sl+stride}", "s_nop 0",
                lambda: e.vm(f"buffer_load_dwordx4 v{reg(1)}, {s(srd,4)}, s{sT(6)} offen{nt} lds", (which, tile))]

    def q_reads(n):
        D, ks, st, ksp, fs = n // 4, n % 4, n // 2, n % 2, n % 2
        f = []
        for qt in range(2):
            f.append(lambda qt=qt: e.lds(f"ds_read_b128 {a(XF(fs,qt),4)}, v{XA(D%2,ks)} offset:{qt*4096}", ('x', fs, qt)))
        for d8 in range(8):
            for sec in range(2):
                off = (st % 4) * 16384 + (d8 // 4) * 256 + ksp * 8192 + sec * 2048
                f.append(lambda d8=d8, sec=sec, off=off: e.lds(f"ds_read_b64_tr_b16 {a(WF(fs,d8)+2*sec,2)}, v{WA(d8%4)} offset:{off}", ('w', fs, d8, sec)))
        return f
    def q_mfmas(n):
        fs = n % 2
        m = []
        for d8 in range(8):
            for qt in range(2):
                def f(d8=d8, qt=qt):
                    if qt == 0 and d8 % 2 == 0:
                        e.need([('x', fs, 0), ('x', fs, 1), ('w', fs, d8, 1), ('w', fs, d8 + 1, 1)])
                    acc = v(O_(d8 % 4, qt), 16) if d8 < 4 else a(O_(d8 % 4, qt), 16)
                    e(f"{MF32} {acc}, {a(WF(fs,d8),4)}, {a(XF(fs,qt),4)}, {acc if n else 0}")
                m.append(f)
        return m
    if not o['skip_q']:
        pt(1)
        emit_list(e, late[:o['late0']])
        pt(2)
        emit_list(e, x_dma(0, 0) + x_dma(0, 1) + w_dma(0) + w_dma(1))
        pt(3)
        stamp(1)
        n_ = e.vm_count([('x', 0), ('w', 0)])
        e(f"s_waitcnt vmcnt({n_})")
        pt(4)
        e("s_barrier")
        pt(5)
        emit_list(e, q_reads(0))
        extra = {n: [] for n in range(40)}
        sc = o['sched']
        def put(n, lo, hi, items):
            if not items: return
            usem0 = lambda its: any(isinstance(x, str) and 'm0' in x for x in its)
            if usem0(items):
                for l2, h2, it2 in extra[n]:
                    assert not usem0(it2) or hi <= l2 or h2 <= lo, (n, lo, hi, l2, h2)
            extra[n].append((lo, hi, items))
        def putk(kind, D, items):
            dn, lo, hi = sc[kind]
            put(4 * D + dn, lo, hi, items)
        put(0, 1, 8, x_dma(1, 0)); put(0, 8, 16, x_dma(1, 1))
        put(1, 1, 8, w_dma(2)); put(2, 1, 8, w_dma(3)); put(3, 8, 16, w_dma(4))
        put(4, 1, 8, x_dma(2, 0)); put(4, 8, 16, x_dma(2, 1)); put(5, 1, 8, w_dma(5))
        ta_left = 10 - o['ta0']
        pkd = {}
        if o['pack']:
            for ch in range(2):
                pd = pack_dma(ch)
                parts = [pd[:5], [pd[0], pd[1], pd[2]] + pd[5:7], [pd[0], pd[2]] + pd[7:]]
                for w_, part in zip(o['pk'][ch], parts): pkd.setdefault(w_, []).extend(part)
        for D in range(10):
            if D >= 2 and D + 1 <= 9: putk('xa', D, x_dma(D + 1, 0)); putk('xb', D, x_dma(D + 1, 1))
            if D >= 2 and 2 * D + 3 <= 19: putk('wa', D, w_dma(2 * D + 3))
            if D == 1: put(6, 8, 16, w_dma(6))
            elif D >= 2 and 2 * D + 4 <= 19: putk('wb', D, w_dma(2 * D + 4))
            bu = []
            if D < ta_left: bu += touch_a()
            bu += pkd.get(D, [])
            for _ in range(o['tbw'][D] if D < len(o['tbw']) else 0): bu += touch_b()
            if D == 0: put(2, 8, 16, bu)
            elif D == 1: put(5, 8, 16, bu)
            else: putk('bu', D, bu)
        bneed = {st: [('w', st + 1)] + ([('x', (st + 1) // 2)] if st % 2 == 1 else []) for st in range(19)}
        bneed[19] = []
        if o['pack']:
            for ch in range(2):
                st = 2 * o['pk'][ch][2] + 2
                bneed[st].append(('p', ch)); put(2 * st + 1, 4, 16, pack_read(ch)); put(2 * st + 2, 0, 16, pack_store(ch))
        kp = o['kpre']
        put(kp, 1, 16, pre('K', 0) + pre('K', 1))
        put(kp + 1, 1, 16, pre('K', 2))
        put(35, 1, 16, pre('K', 3))
        put(36, 1, 16, pre('K', 4) + pre('V', 0))
        put(37, 1, 16, pre('K', 5) + pre('V', 1))
        put(38, 1, 16, pre('K', 6) + pre('V', 2))
        put(39, 1, 16, pre('K', 7) + pre('V', 3))
        for k_, r_ in o['tbt']:
            for _ in range(r_): put(k_, 8, 16, touch_b())
        rest = late[o['late0']:]
        nq = (len(rest) + 1) // 2
        lateq = {0: rest[:nq], 1: rest[nq:]}
        for n in range(40):
            mf = q_mfmas(n)
            if o['qtrace'] and n % 2 == 0 and o['qt0'] + 1 <= n // 2 <= o['qt0'] + 13: e(f"s_memtime {s(sStamp(n//2-o['qt0']), 2)}")
            if n % 2 == 1:
                st = n // 2
                vmc = e.vm_count(bneed[st])
                e(f"s_waitcnt {'vmcnt(%d) ' % vmc if vmc is not None else ''}lgkmcnt(0)"); e.lgkm0()
                e("s_barrier")
            fill = {}
            if n in lateq: fill = merge(fill, spread(lateq[n], list(range(0, 16))))
            if n < 39: fill = merge(fill, spread(q_reads(n + 1), list(range(0, 12))))
            for lo, hi, items in extra[n]: fill = merge(fill, spread(items, list(range(lo, hi))))
            interleave(e, mf, fill)
    else:
        emit_list(e, late)
        for t in range(8): emit_list(e, pre('K', t))
        for t in range(4): emit_list(e, pre('V', t))
    stamp(2)
    emit_list(e, pre('V', 4))
    e("s_nop 7")
    if not o['skip_q']:
        for dtl in range(4):
            for qt in range(2):
                b = O_(dtl, qt)
                for i in range(0, 16, 2): e(f"v_pk_mul_f32 {v(b+i,2)}, {v(b+i,2)}, {s(sC,2)} op_sel_hi:[1,0]")
                for sx in range(2):
                    for jj in range(4):
                        e(f"v_cvt_pk_bf16_f32 v{QW(qt, dtl*2+sx)+jj}, v{b+sx*8+2*jj}, v{b+sx*8+2*jj+1}")
        emit_list(e, pre('V', 5))
        for dtl in range(4):
            for qt in range(2):
                b = O_(dtl, qt)
                for i in range(16): e(f"v_accvgpr_read_b32 v{i}, a{b+i}")
                for i in range(0, 16, 2): e(f"v_pk_mul_f32 {v(i,2)}, {v(i,2)}, {s(sC,2)} op_sel_hi:[1,0]")
                for jj in range(8): e(f"v_cvt_pk_bf16_f32 v{16+jj}, v{2*jj}, v{2*jj+1}")
                for jj in range(8): e(f"v_accvgpr_write_b32 a{QP(qt, dtl*2)+jj}, v{16+jj}")
    else:
        emit_list(e, pre('V', 5))
        e(f"v_lshlrev_b32 v{T(0)}, 4, v{LANE}")
        for i in range(16):
            e(f"s_mov_b32 s{sT(2)}, {i*1024}")
            e(f"buffer_load_dwordx4 {v(128+4*i,4)}, v{T(0)}, {s(sV,4)}, s{sT(2)} offen")
            e(f"buffer_load_dwordx4 {a(128+4*i,4)}, v{T(0)}, {s(sV,4)}, s{sT(2)} offen")
        e("s_waitcnt vmcnt(0)")
    e(f"s_mov_b32 s{sKV}, {5*8192}")
    e(f"s_mov_b32 s{sHead}, 0")
    n_ = e.vm_count([('K', 0), ('K', 1)])
    e(f"s_waitcnt vmcnt({n_})")
    e("s_barrier")
    stamp(3)

    def k_read(g, tile):
        if o['no_lds']: return lambda: e.tag.__setitem__(('k', g), 0)
        return lambda: e.lds(f"ds_read_b128 {a(KF(g),4)}, v{KA} offset:{(tile%8)*KT+g*32}", ('k', g))
    def v_read(g, tile):
        dt, sx = g // 2, g % 2
        sl = tile % 8
        if o['no_lds']: return [lambda: e.tag.__setitem__(('v', g), 0)]
        return [lambda sec=sec: e.lds(f"ds_read_b64_tr_b16 {a(VF(g)+2*sec,2)}, v{VA0 if sl < 4 else VA1} offset:{(sl%4)*VT+sx*4352+sec*512+dt*64}", ('v', g)) for sec in range(2)]
    def qk(g, qt, p, c0=None):
        d = v(S_(p, qt), 16)
        c = d if g else (c0 if c0 is not None else v(CI(qt), 16))
        return f"{MF32} {d}, {a(KF(g),4)}, {v(QW(qt,g),4)}, {c}"
    def pv(g, qt, p, first=False):
        dt, sx = g // 2, g % 2
        d = a(O_(dt, qt), 16)
        c = "0" if (first and sx == 0) else d
        return f"{MF32} {d}, {a(VF(g),4)}, {v(P_(p,qt,sx),4)}, {c}"
    sm_exp = lambda p, k: f"v_exp_f32 v{32*p+k}, v{32*p+k}"
    sm_add = lambda p, k: f"v_add_f32 v{L_(k//16)}, v{L_(k//16)}, v{32*p+k}"
    sm_cvt = lambda p, k: f"v_cvt_pk_bf16_f32 v{96+16*p+k//2}, v{32*p+k}, v{32*p+k+1}"
    def kdma(i):
        return [f"s_add_u32 m0, s{sWK}, {(i%8)*KT}",
                f"buffer_load_dwordx4 v{KD(0)}, {s(sK,4)}, s{sKV} offen{nt} lds",
                f"buffer_load_dwordx4 v{KD(1)}, {s(sK,4)}, s{sKV} offen offset:1056{nt} lds"]
    def vdma(i):
        return [f"s_add_u32 m0, s{sWV}, {((i+6)%8)*VT}",
                f"buffer_load_dwordx4 v{VD(0)}, {s(sV,4)}, s{sKV} offen{nt} lds",
                f"buffer_load_dwordx4 v{VD(1)}, {s(sV,4)}, s{sKV} offen offset:1088{nt} lds",
                f"s_add_u32 s{sKV}, s{sKV}, 8192"]

    def iteration(i, do_qk=True, do_pv=True, first_pv=False, carry=True, rd_lo=(1, 1), rd_hi=(1, 1), early_dma=True, tail=()):
        p = i % 2
        mfs = []
        for g in range(8):
            if do_qk: mfs += [qk(g, 0, 1 - p), qk(g, 1, 1 - p)]
            if do_pv: mfs += [pv(g, 0, 1 - p, first_pv), pv(g, 1, 1 - p, first_pv)]
        ng = len(mfs); per = ng // 8; sc = ng / 32
        fixed = {k: [] for k in range(ng)}
        cap = {k: o['cap'] for k in range(ng)}
        def tags(g):
            return ([('k', g), ('k', g + 1)] if do_qk else []) + ([('v', g), ('v', g + 1)] if do_pv else [])
        endw = {}
        for g in (2, 6): endw[g * per - 1] = [lambda g=g: e.need(tags(g))]; cap[g * per - 1] -= 4
        endw[ng - 1] = list(tail)
        cap[ng - 1] -= 4 * (1 + len(tail))
        bg = 4 * per - 1
        def bar():
            if o['no_bar']: e.need(tags(4))
            else:
                e.need(tags(4), extra="vmcnt(16)"); e("s_barrier")
        fixed[bg].append((0, bar)); cap[bg] = o['barcap']
        if not o['no_dma']:
            g0, g1, g2, g3 = [int(x * sc) for x in o['dma_gaps']]
            kd = kdma(i)
            fixed[g0 - 1].append((4, kd[0])); fixed[g0].append((0, kd[1])); fixed[g1].append((0, kd[2]))
            cap[g0] = cap[g1] = o['dmacap']
            if early_dma:
                vd = vdma(i - 1)
                fixed[g2 - 1].append((4, vd[0])); fixed[g2].append((0, vd[1])); fixed[g3].append((0, vd[2])); fixed[g3 + 1].append((4, vd[3]))
                cap[g2] = cap[g3] = o['dmacap']
        for g in range(8):
            fr = (g + 4) % 8
            rds = []
            if g < 4:
                if rd_lo[0]: rds.append(k_read(fr, i + 1))
                if rd_lo[1]: rds += v_read(fr, i - 1)
            else:
                if rd_hi[0]: rds.append(k_read(fr, i + 2))
                if rd_hi[1]: rds += v_read(fr, i)
            ok = [k for k in range(g * per, (g + 1) * per) if cap[k] >= 12] or list(range(g * per, (g + 1) * per))
            ok = sorted(ok, key=lambda k: -(k % 2))
            slots = sorted(ok[n % len(ok)] for n in range(len(rds)))
            for k, r in zip(slots, rds): fixed[k].append((4, r))
        room = {k: cap[k] - sum(c for c, _ in fixed[k]) for k in range(ng)}
        sm = []
        if not o['no_valu']:
            if carry: sm += [(4, sm_add(1 - p, 31), 0), (4, sm_cvt(1 - p, 30), 0)]
            for k in range(32):
                sm.append((8, sm_exp(p, k), None))
                if k >= 1: sm.append((4, sm_add(p, k - 1), None))
                if k >= 2 and k % 2 == 0: sm.append((4, sm_cvt(p, k - 2), None))
        tot = sum(c for c, _, _ in sm); troom = sum(max(r, 0) for r in room.values())
        scale = tot / troom if troom else 0
        fill = {k: [] for k in range(ng)}
        k = 0; cum_room = max(room[0], 0) * scale; cum = 0
        for c, it, force in sm:
            while force is None and k < ng - 1 and cum + c / 2 > cum_room:
                k += 1; cum_room += max(room[k], 0) * scale
            fill[k].append(it); cum += c
        out = {}
        for k in range(ng):
            fx = [it for _, it in fixed[k]]
            out[k] = (fx + fill[k] if k == bg else fill[k][:1] + fx + fill[k][1:]) + endw.get(k, [])
        interleave(e, mfs, out)

    e.label("K1_HEAD")
    e(f"v_mov_b32 v{L_(0)}, 0"); e(f"v_mov_b32 v{L_(1)}, 0")
    for g in range(8): k_read(g, 0)()
    mf = []
    for g in range(8):
        def first(g=g):
            e.need([('k', g)])
            e(qk(g, 0, 0, c0="0"))
        mf += [first, qk(g, 1, 0, c0="0")]
    interleave(e, mf, {2 * (g + 4) + 1: [k_read(g, 1)] for g in range(4)})
    e("s_nop 10")
    for qt in range(2):
        b = S_(0, qt); m = T(qt * 2); m2 = T(qt * 2 + 1)
        e(f"v_max3_f32 v{m}, v{b}, v{b+1}, v{b+2}")
        for i in range(3, 15, 2): e(f"v_max3_f32 v{m}, v{m}, v{b+i}, v{b+i+1}")
        e(f"v_max_f32 v{m}, v{m}, v{b+15}")
        e(f"v_mov_b32 v{m2}, v{m}")
    e("s_nop 1")
    for qt in range(2): e(f"v_permlane32_swap_b32 v{T(qt*2)}, v{T(qt*2+1)}")
    e("s_nop 1")
    for qt in range(2):
        m = T(qt * 2); m2 = T(qt * 2 + 1)
        e(f"v_max_f32 v{m}, v{m}, v{m2}")
        e(f"v_sub_f32 v{m}, 0, v{m}")
    for qt in range(2):
        for i in range(16): e(f"v_mov_b32 v{CI(qt)+i}, v{T(qt*2)}")
    for qt in range(2):
        for i in range(16): e(f"v_add_f32 v{S_(0,qt)+i}, v{S_(0,qt)+i}, v{T(qt*2)}")
    stamp(4)
    w0 = lambda q, vv: [lambda: e.need(([('k', 0), ('k', 1)] if q else []) + ([('v', 0), ('v', 1)] if vv else []))]
    emit_list(e, w0(1, 0))
    iteration(0, do_pv=False, carry=False, rd_lo=(1, 0), early_dma=False, tail=w0(1, 1))
    iteration(1, first_pv=True, tail=[f"s_mov_b32 s{sCnt}, 4"] + w0(1, 1))
    e.label("K1_ALOOP")
    snap = lambda: (e.lds_issued - e.lds_done, {k: e.lds_issued - x for k, x in e.tag.items() if k[0] in ('k', 'v')})
    st0 = snap()
    for i in (2, 3, 4, 5): iteration(i, tail=w0(1, 1))
    iteration(6, tail=[f"s_sub_u32 s{sCnt}, s{sCnt}, 1", f"s_cmp_eq_u32 s{sCnt}, 0"] + w0(1, 1) + ["s_cbranch_scc1 K1_AEXIT"])
    saved = (e.lds_issued, e.lds_done, dict(e.tag))
    iteration(7, tail=w0(1, 1)); iteration(8, tail=w0(1, 1))
    iteration(9, tail=w0(1, 1) + ["s_branch K1_ALOOP"])
    assert snap() == st0, (snap(), st0)
    e.lds_issued, e.lds_done, e.tag = saved
    e.label("K1_AEXIT")
    iteration(31, do_qk=False, rd_lo=(0, 1), rd_hi=(0, 1))
    if not o['no_valu']:
        e(sm_add(1, 31)); e(sm_cvt(1, 30))
    for g in range(4, 8): emit_list(e, v_read(g, 31))
    vd = vdma(31) if not o['no_dma'] else ["s_nop 0"] * 4
    mf = []
    for g in range(8):
        def first(g=g):
            e.need([('v', g)])
            e(pv(g, 0, 1))
        mf += [first, pv(g, 1, 1)]
    interleave(e, mf, {2: [vd[0]], 3: [vd[1]], 7: [vd[2]], 8: [vd[3]]})
    stamp(5)
    for qt in range(2): e(f"v_mov_b32 v{T(qt)}, v{L_(qt)}")
    e("s_nop 1")
    for qt in range(2): e(f"v_permlane32_swap_b32 v{L_(qt)}, v{T(qt)}")
    e("s_nop 1")
    for qt in range(2): e(f"v_add_f32 v{L_(qt)}, v{L_(qt)}, v{T(qt)}")
    for qt in range(2): e(f"v_rcp_f32 v{T(2+2*qt)}, v{L_(qt)}")
    e("s_nop 7")
    n = 0
    for dt in range(4):
        for qt in range(2):
            base = 32 * (n % 2); n += 1
            for i in range(16): e(f"v_accvgpr_read_b32 v{base+i}, a{O_(dt,qt)+i}")
            for i in range(0, 16, 2): e(f"v_pk_mul_f32 {v(base+i,2)}, {v(base+i,2)}, {v(T(2+2*qt),2)} op_sel_hi:[1,0]")
            for i in range(8): e(f"v_cvt_pk_bf16_f32 v{base+16+i}, v{base+2*i}, v{base+2*i+1}")
            if qt == 0: e(f"s_add_u32 s{sT(2)}, s{sOo}, {dt*8192}")
            e(f"buffer_store_dwordx4 {v(base+16,4)}, v{OD}, {s(sO,4)}, s{sT(2)} offen offset:{qt*2048}")
            e(f"buffer_store_dwordx4 {v(base+20,4)}, v{OD}, {s(sO,4)}, s{sT(2)} offen offset:{qt*2048+512}")
    stamp(6)
    e(f"s_cmp_lg_u32 s{sHead}, 0")
    e("s_cbranch_scc1 K1_FIN")
    e(f"s_mov_b32 s{sHead}, 1")
    if o['stamps'] and not o['qtrace'] and not o['ptrace']:
        e("s_waitcnt lgkmcnt(0)")
        for k in range(3): e(f"s_mov_b64 {s(sStamp(8+k),2)}, {s(sStamp(4+k),2)}")
    e(f"s_add_u32 s{sOo}, s{sOo}, 32768")
    for i in range(64): e(f"v_accvgpr_read_b32 v{128+i}, a{128+i}")
    e("s_branch K1_HEAD")
    e.label("K1_FIN")
    if o['stamps']:
        stamp(7)
        e(f"s_memrealtime {s(sStamp(15), 2)}")
        dump_stamps(e, sWave, sT(0), T(0), 96, 94, 64 << 20)
    e.label("K1_END")
    e("s_endpgm")
    return e

HEADER = open("concat_heads__gqa_block_cached__gqa_block_cached__near_ridge.s.ref").read().split("; Override launch")[0]

def build(o):
    from g2k2 import gen_k2
    e1 = gen_k1(o)
    errs = check_hazards(e1.lines, "k1")
    out = HEADER
    out += f"; @launch kernel={K1} grid=(256,1,1) block=(256,1,1) lds=163840\n"
    if not o['k1only']:
        out += f"; @launch kernel={K2} grid=(256,1,1) block=(256,1,1) lds={o['k2_r']*20480}\n"
    out += '.amdgcn_target "amdgcn-amd-amdhsa--gfx950"\n.text\n'
    out += e1.text()
    if not o['k1only']:
        e2 = gen_k2(o)
        errs += check_hazards(e2.lines, "k2")
        out += e2.text()
    out += kernel_desc(K1, 512, 256)
    if not o['k1only']:
        out += kernel_desc(K2, 256, 256)
    for x in errs[:40]: print(x, file=sys.stderr)
    return out

if __name__ == "__main__":
    o = dict(DEF)
    for kv in sys.argv[2:]:
        k, val = kv.split("=")
        assert k in o, k
        o[k] = json.loads(val)
    open(sys.argv[1], "w").write(build(o))
```

```python
import sys, json
from asmlib import *

K1 = "attn_kernel"
K2 = "oproj_kernel"
MF32 = "v_mfma_f32_32x32x16_bf16"
MF16 = "v_mfma_f32_16x16x32_bf16"

DEF = dict(stamps=0, nt=1, k1only=0, skip_q=0, no_dma=0, no_bar=0, no_valu=0, no_lds=0, map=0, nb=3, tb_nt=0, ta=1,
           cap=22, dmacap=4, barcap=0, dma_gaps=[19, 27, 3, 11], codepf=1, qtrace=0,
           k2_t=0, k2_tnt=0, k2_r=4, k2_t0=0, k2_vm=0, k2_tf=1, k2_noo=0, k2_nodma=0, k2_nobar=0, k2_to=1, ost='', pst='', kvp='nt', tap='', tbp='', ta_nt=0,
           fake16=0, pack=1, ta0=3, late0=200, tbw=[], tbt=[], tb_l=16, tb0=0, qt0=0, ptrace=0, sched=dict(xa=[-1,1,8], xb=[-1,8,16], wa=[0,1,8], bu=[0,9,16], wb=[2,1,10]), pk=[[0,1,2],[4,5,6]], kpre=33)

WP_OFF = 32 << 20
S_ = lambda p, qt: 32 * p + 16 * qt
CI = lambda qt: 64 + 16 * qt
P_ = lambda p, qt, sx: 96 + 16 * p + 8 * qt + 4 * sx
QW = lambda qt, ks: 128 + 32 * qt + 4 * ks
KA, VA0, VA1 = 192, 193, 194
L_ = lambda qt: 196 + qt
KD = lambda e: 198 + e
VD = lambda e: 200 + e
KDP = lambda e: 202 + e
VDP = lambda e: 204 + e
LANE, OD, TA, TB, TD = 206, 207, 208, 209, 210
T = lambda k: 212 + k
XD = lambda e: 228 + e
WD = lambda e: 236 + e
XA = lambda sl, k: 240 + 4 * sl + k
WA = lambda k: 248 + k
PD = lambda p: 128 + p
PA, PO = 133, 134
PF = lambda t: 136 + 4 * t
O_ = lambda dt, qt: (dt * 2 + qt) * 16
QP = lambda qt, ks: 128 + 32 * qt + 4 * ks
KF = lambda g: 192 + 4 * g
VF = lambda g: 224 + 4 * g
XF = lambda st, qt: 128 + 40 * st + 4 * qt
WF = lambda st, d8: 128 + 40 * st + 8 + 4 * d8
sX, sW, sK, sV, sO, sTA, sTB, sWO, sWP = 4, 8, 12, 16, 20, 24, 28, 32, 36
sWave, sWK, sWV, sW4k, sW8k, sCnt, sKV, sHead, sC, sOo, sTAstep, sTAo, sTBo = 40, 41, 42, 43, 44, 45, 46, 47, 48, 49, 50, 51, 52
sT = lambda k: 53 + k
sStamp = lambda k: 60 + 2 * k
sDbg = 92
KT, VT = 8448, 8448
VBASE = 8 * KT
XSLOT = [32768, 131072]
WSLOT = lambda st: 65536 + (st % 4) * 16384

def emit_list(e, items):
    for f in items:
        f() if callable(f) else e(f)

def interleave(e, mf, fill):
    for i, m in enumerate(mf):
        m() if callable(m) else e(m)
        emit_list(e, fill.get(i, []))

def spread(items, gaps):
    d = {}
    n = len(items)
    for i, it in enumerate(items):
        d.setdefault(gaps[i * len(gaps) // n], []).append(it)
    return d

def merge(*ds):
    out = {}
    for d in ds:
        for k, vv in d.items():
            out.setdefault(k, []).extend(vv)
    return out

def dump_stamps(e, wave_sgpr, tmp_s, vt, srd, ws_lo, off):
    e("s_waitcnt lgkmcnt(0)")
    e("s_getreg_b32 s86, hwreg(HW_REG_XCC_ID)"); e("s_getreg_b32 s87, hwreg(HW_REG_HW_ID)")
    e(f"s_add_u32 s{srd}, s{ws_lo}, {off}"); e(f"s_addc_u32 s{srd+1}, s{ws_lo+1}, 0")
    e(f"s_mov_b32 s{srd+2}, {1<<20}"); e(f"s_mov_b32 s{srd+3}, 0x20000")
    e(f"s_lshl_b32 s{tmp_s}, s2, 2"); e(f"s_add_u32 s{tmp_s}, s{tmp_s}, s{wave_sgpr}"); e(f"s_lshl_b32 s{tmp_s}, s{tmp_s}, 7")
    e(f"v_mov_b32 v{vt}, 0")
    for k in range(16):
        e(f"v_mov_b32 v{vt+2}, s{60+2*k}"); e(f"v_mov_b32 v{vt+3}, s{61+2*k}")
        e(f"buffer_store_dwordx2 {v(vt+2,2)}, v{vt}, {s(srd,4)}, s{tmp_s} offen offset:{8*k}")
        e("s_nop 1")

def code_prefetch(e, base, label_end, vt, i_sgpr, st, lane):
    e(f"s_getpc_b64 {s(st,2)}")
    e.label(base)
    e(f"v_and_b32 v{vt}, 15, v{lane}")
    e(f"v_lshlrev_b32 v{vt}, 7, v{vt}")
    e(f"s_lshl_b32 s{st+2}, s{i_sgpr}, 11")
    e(f"v_add_u32 v{vt}, s{st+2}, v{vt}")
    e(f"v_min_u32 v{vt}, {label_end}, v{vt}")
    e.vm(f"global_load_dword v{TD}, v{vt}, {s(st,2)}")

def gen_k1(o):
    e = Emit()
    nt = (" " + o['kvp'].replace("+", " ")) if o['kvp'] else ""
    ost = (" " + o['ost'].replace("+", " ")) if o['ost'] else ""
    pst = (" " + o['pst'].replace("+", " ")) if o['pst'] else ""
    tac = [0]
    def stamp(k):
        if o['stamps'] and not ((o['qtrace'] or o['ptrace']) and k != 0): e(f"s_memtime {s(sStamp(k), 2)}")
    L = LANE
    t0, t1, t2, t3 = T(0), T(1), T(2), T(3)
    J, I, BLK, B, H0, TMP = 96, 97, 98, 99, 100, 101
    e.raw(f".globl {K1}\n.p2align 8\n.type {K1},@function")
    e.label(K1)
    e("s_cmp_ge_u32 s2, 256")
    e("s_cbranch_scc1 K1_END")
    e("s_load_dwordx16 s[64:79], s[0:1], 0")
    e("s_load_dwordx4 s[80:83], s[0:1], 64")
    e("s_load_dwordx2 s[84:85], s[0:1], 96")
    stamp(0)
    if o['stamps']: e(f"s_memrealtime {s(sStamp(14), 2)}")
    e(f"v_lshrrev_b32 v{t0}, 6, v0")
    e(f"v_and_b32 v{L}, 63, v0")
    e(f"v_readfirstlane_b32 s{sWave}, v{t0}")
    e(f"s_and_b32 s{J}, s2, 7")
    e(f"s_lshr_b32 s{I}, s2, 3")
    e(f"s_lshr_b32 s{BLK}, s{J}, 2")
    e(f"s_and_b32 s{J}, s{J}, 3")
    if o['map'] == 0:
        e(f"s_lshl_b32 s{H0}, s{J}, 3"); e(f"s_and_b32 s{TMP}, s{I}, 3"); e(f"s_lshl_b32 s{TMP}, s{TMP}, 1")
        e(f"s_add_u32 s{H0}, s{H0}, s{TMP}"); e(f"s_lshr_b32 s{B}, s{I}, 2")
    else:
        e(f"s_lshl_b32 s{B}, s{J}, 1"); e(f"s_lshr_b32 s{TMP}, s{I}, 4"); e(f"s_add_u32 s{B}, s{B}, s{TMP}")
        e(f"s_and_b32 s{H0}, s{I}, 15"); e(f"s_lshl_b32 s{H0}, s{H0}, 1")
    e(f"s_lshl_b32 s{sW4k}, s{sWave}, 12")
    e(f"s_lshl_b32 s{sW8k}, s{sWave}, 13")
    e(f"v_lshrrev_b32 v{t0}, 3, v{L}")
    e(f"s_lshl_b32 s{TMP}, s{sWave}, 6")
    e(f"v_add_u32 v{t0}, s{TMP}, v{t0}")
    e(f"v_mul_u32_u24 v{t0}, 1280, v{t0}")
    e(f"v_and_b32 v{t1}, 7, v{L}")
    e(f"v_lshrrev_b32 v{t2}, 4, v{L}")
    e(f"v_xor_b32 v{t1}, v{t1}, v{t2}")
    e(f"v_lshl_add_u32 v{XD(0)}, v{t1}, 4, v{t0}")
    e(f"v_xor_b32 v{t1}, 64, v{XD(0)}")
    for k in range(1, 8):
        e(f"v_add_u32 v{XD(k)}, {k*8*1280-(k%4)*1024}, v{XD(0) if k%2==0 else t1}")
    e(f"v_lshrrev_b32 v{t0}, 5, v{L}")
    e(f"v_and_b32 v{t1}, 31, v{L}")
    e(f"v_lshlrev_b32 v{t2}, 2, v{t0}")
    e(f"v_xor_b32 v{t1}, v{t1}, v{t2}")
    e(f"v_lshlrev_b32 v{t1}, 4, v{t1}")
    e(f"s_lshl_b32 s{TMP}, s{sWave}, 3")
    e(f"v_add_u32 v{t0}, s{TMP}, v{t0}")
    e(f"v_lshl_add_u32 v{WD(0)}, v{t0}, 13, v{t1}")
    e(f"v_xor_b32 v{t1}, 128, v{WD(0)}")
    for k in range(1, 4):
        e(f"v_add_u32 v{WD(k)}, {k*2*8192-k*1024}, v{WD(0) if k%2==0 else t1}")
    big = 0x40000000
    e(f"v_mov_b32 v{t3}, {big}")
    if o['map'] == 0:
        e(f"s_and_b32 s{TMP}, s{I}, 3"); e(f"s_lshl_b32 s{TMP}, s{TMP}, 6")
        e(f"v_add_u32 v{t0}, s{TMP}, v{L}"); e(f"v_mul_u32_u24 v{t0}, 1280, v{t0}")
        e(f"v_lshrrev_b32 v{t1}, 2, v{L}"); e(f"s_lshl_b32 s{TMP}, s{B}, 3"); e(f"v_add_u32 v{t1}, s{TMP}, v{t1}")
        e(f"v_lshlrev_b32 v{t1}, 13, v{t1}"); e(f"v_and_b32 v{t2}, 3, v{L}"); e(f"v_lshl_add_u32 v{t1}, v{t2}, 7, v{t1}")
        e(f"v_cmp_gt_u32 vcc, 32, v{L}"); e("s_nop 1"); e(f"v_cndmask_b32 v{t1}, v{t3}, v{t1}, vcc")
        nw = 1
    else:
        e(f"s_and_b32 s{TMP}, s{I}, 15"); e(f"s_lshl_b32 s{TMP}, s{TMP}, 4")
        e(f"v_add_u32 v{t0}, s{TMP}, v{L}"); e(f"v_mul_u32_u24 v{t0}, 1280, v{t0}")
        e(f"v_cmp_gt_u32 vcc, 16, v{L}"); e("s_nop 1"); e(f"v_cndmask_b32 v{t0}, v{t3}, v{t0}, vcc")
        e(f"s_lshr_b32 s{TMP}, s{I}, 4"); e(f"s_lshl_b32 s{TMP}, s{TMP}, 1"); e(f"s_add_u32 s{TMP}, s{TMP}, s{sWave}")
        e(f"s_sub_u32 s{TMP}, s{TMP}, 1"); e(f"s_lshl_b32 s{TMP}, s{TMP}, 4"); e(f"s_and_b32 s{TMP}, s{TMP}, 63")
        e(f"v_lshrrev_b32 v{t1}, 2, v{L}"); e(f"v_add_u32 v{t1}, s{TMP}, v{t1}")
        e(f"v_lshlrev_b32 v{t1}, 13, v{t1}"); e(f"v_and_b32 v{t2}, 3, v{L}"); e(f"v_lshl_add_u32 v{t1}, v{t2}, 7, v{t1}")
        nw = 2
    e(f"s_cmp_eq_u32 s{sWave}, 0"); e("s_cselect_b64 vcc, -1, 0"); e(f"v_cndmask_b32 v{TA}, v{t1}, v{t0}, vcc")
    e(f"s_cmp_gt_u32 s{sWave}, {nw}"); e("s_cselect_b64 vcc, -1, 0"); e(f"v_cndmask_b32 v{TA}, v{TA}, v{t3}, vcc")
    e("s_waitcnt lgkmcnt(0)")
    e(f"s_cmp_eq_u32 s{BLK}, 0")
    e("s_cselect_b32 s64, s64, s74"); e("s_cselect_b32 s65, s65, s75")
    e("s_cselect_b32 s70, s70, s80"); e("s_cselect_b32 s71, s71, s81")
    e("s_cselect_b32 s66, s66, s76"); e("s_cselect_b32 s67, s67, s77")
    e("s_cselect_b32 s68, s68, s78"); e("s_cselect_b32 s69, s69, s79")
    e("s_cselect_b32 s72, s72, s82"); e("s_cselect_b32 s73, s73, s83")
    e(f"s_mul_i32 s{TMP}, s{B}, 327680")
    e(f"s_add_u32 s{sX}, s64, s{TMP}"); e(f"s_addc_u32 s{sX+1}, s65, 0")
    e(f"s_mov_b32 s{sX+2}, 327680"); e(f"s_mov_b32 s{sX+3}, 0x20000")
    e(f"s_lshl_b32 s{TMP}, s{H0}, 8")
    e(f"s_add_u32 s{sW}, s70, s{TMP}"); e(f"s_addc_u32 s{sW+1}, s71, 0")
    e(f"s_sub_u32 s{sW+2}, {640*8192}, s{TMP}"); e(f"s_mov_b32 s{sW+3}, 0x20000")
    e(f"s_cmp_eq_u32 s{sWave}, 0")
    for k in range(3): e(f"s_cselect_b32 s{sTA+k}, s{sX+k}, s{sW+k}")
    e(f"s_mov_b32 s{sTA+3}, 0x20000")
    e(f"s_movk_i32 s{sTAstep}, 128")
    e(f"s_cselect_b32 s{sTAstep}, s{sTAstep}, {64*8192}")
    e(f"s_mov_b32 s{sTAo}, 0")

    def x_dma(D, half):
        f = [f"s_add_u32 m0, s{sW8k}, {XSLOT[D%2]+half*4096}", f"s_mov_b32 s{sT(0)}, {D*128}"]
        for k in range(4):
            f.append(lambda k=k: e.vm(f"buffer_load_dwordx4 v{XD(half*4+k)}, {s(sX,4)}, s{sT(0)} offen offset:{k*1024} lds", ('x', D)))
        return f
    def w_dma(st):
        f = [f"s_add_u32 m0, s{sW4k}, {WSLOT(st)}", f"s_mov_b32 s{sT(1)}, {st*32*8192}"]
        for k in range(4):
            f.append(lambda k=k: e.vm(f"buffer_load_dwordx4 v{WD(k)}, {s(sW,4)}, s{sT(1)} offen offset:{k*1024} lds", ('w', st)))
        return f
    def touch_a():
        if not o['ta']: return []
        tac[0] += 1
        pol = " nt" if tac[0] <= o['ta_nt'] else (" " + o['tap'].replace("+", " ") if o['tap'] else "")
        return [lambda: e.vm(f"buffer_load_dword v{TD}, v{TA}, {s(sTA,4)}, s{sTAo} offen{pol}"), f"s_add_u32 s{sTAo}, s{sTAo}, s{sTAstep}"]
    def touch_b():
        return [lambda: e.vm(f"buffer_load_dword v{TD}, v{TB}, {s(sTB,4)}, s{sTBo} offen" + (" " + o['tbp'].replace("+", " ") if o['tbp'] else "")), f"s_add_u32 s{sTBo}, s{sTBo}, {o['tb_l']*256}"]
    pt = lambda k: e(f"s_memtime {s(sStamp(k), 2)}") if o['ptrace'] else None
    if not o['skip_q']:
        for _ in range(o['ta0']): emit_list(e, touch_a())
    if o['codepf']:
        code_prefetch(e, "K1_PFBASE", "K1_END-K1_PFBASE" if o["k1only"] else "K2_END-K1_PFBASE", t0, I, 56, L)
    e(f"s_lshl_b32 s{TMP}, s{B}, 5"); e(f"s_add_u32 s{TMP}, s{TMP}, s{H0}"); e(f"s_lshl_b32 s{TMP}, s{TMP}, 18")
    e(f"s_add_u32 s{sK}, s66, s{TMP}"); e(f"s_addc_u32 s{sK+1}, s67, 0")
    e(f"s_mov_b32 s{sK+2}, 524288"); e(f"s_mov_b32 s{sK+3}, 0x20000")
    e(f"s_add_u32 s{sV}, s68, s{TMP}"); e(f"s_addc_u32 s{sV+1}, s69, 0")
    e(f"s_mov_b32 s{sV+2}, 524288"); e(f"s_mov_b32 s{sV+3}, 0x20000")
    e(f"s_bitcmp1_b32 s{sWave}, 0")
    e(f"s_cselect_b32 s{sTB}, s{sV}, s{sK}"); e(f"s_cselect_b32 s{sTB+1}, s{sV+1}, s{sK+1}")
    e(f"s_mov_b32 s{sTB+2}, 524288"); e(f"s_mov_b32 s{sTB+3}, 0x20000")
    e(f"s_lshr_b32 s{sTBo}, s{sWave}, 1"); e(f"s_mul_i32 s{sTBo}, s{sTBo}, {o['tb_l']*128}")
    if o['tb0']: e(f"s_add_u32 s{sTBo}, s{sTBo}, {o['tb0']*8192}")
    e(f"v_lshlrev_b32 v{TB}, 7, v{L}")
    e(f"v_cmp_gt_u32 vcc, {o['tb_l']}, v{L}"); e("s_nop 1"); e(f"v_cndmask_b32 v{TB}, v{t3}, v{TB}, vcc")
    e(f"s_lshl_b32 s{TMP}, s{BLK}, 3"); e(f"s_add_u32 s{TMP}, s{TMP}, s{B}"); e(f"s_lshl_b32 s{TMP}, s{TMP}, 21")
    e(f"s_add_u32 s{sO}, s84, s{TMP}"); e(f"s_addc_u32 s{sO+1}, s85, 0")
    e(f"s_mov_b32 s{sO+2}, {2<<20}"); e(f"s_mov_b32 s{sO+3}, 0x20000")
    e(f"s_lshl_b32 s{sOo}, s{H0}, 15")
    e(f"s_lshl_b32 s{TMP}, s{J}, 5"); e(f"s_add_u32 s{TMP}, s{TMP}, s{I}")
    e(f"s_mul_i32 s{sT(2)}, s{TMP}, 40960")
    e(f"s_add_u32 s{sWO}, s72, s{sT(2)}"); e(f"s_addc_u32 s{sWO+1}, s73, 0")
    e(f"s_mov_b32 s{sWO+2}, 40960"); e(f"s_mov_b32 s{sWO+3}, 0x20000")
    e(f"s_mul_i32 s{TMP}, s{TMP}, 5120")
    e(f"s_mul_i32 s{sT(2)}, s{BLK}, 5242880")
    e(f"s_add_u32 s{sT(2)}, s{sT(2)}, {WP_OFF}")
    e(f"s_add_u32 s{sT(2)}, s{sT(2)}, s{TMP}")
    e(f"s_add_u32 s{sWP}, s84, s{sT(2)}"); e(f"s_addc_u32 s{sWP+1}, s85, 0")
    e(f"s_sub_u32 s{sWP+2}, 5242880, s{TMP}"); e(f"s_mov_b32 s{sWP+3}, 0x20000")
    if o['stamps']:
        e(f"s_mov_b64 s[94:95], s[84:85]")
    e(f"s_mul_i32 s{sWK}, s{sWave}, {2*1056}")
    e(f"s_add_u32 s{sWV}, s{sWK}, {VBASE}")
    e(f"s_mov_b32 s{sC}, 0x3e0293ee")
    e(f"v_and_b32 v{t0}, 31, v{L}")
    e(f"v_lshlrev_b32 v{t0}, 7, v{t0}")
    e(f"v_add_u32 v{t0}, s{sW8k}, v{t0}")
    e(f"v_lshrrev_b32 v{t1}, 5, v{L}")
    e(f"v_bfe_u32 v{t2}, v{L}, 1, 3")
    e(f"v_xor_b32 v{t1}, v{t1}, v{t2}")
    e(f"v_lshl_add_u32 v{t0}, v{t1}, 4, v{t0}")
    for k in range(4):
        e(f"v_xor_b32 v{t1}, {k<<5}, v{t0}")
        for sl in range(2): e(f"v_add_u32 v{XA(sl,k)}, {XSLOT[sl]}, v{t1}")
    e(f"v_bfe_u32 v{t0}, v{L}, 2, 2")
    e(f"v_lshrrev_b32 v{t1}, 5, v{L}")
    e(f"v_lshl_add_u32 v{t1}, v{t1}, 3, v{t0}")
    e(f"v_lshlrev_b32 v{t1}, 9, v{t1}")
    e(f"v_bfe_u32 v{t2}, v{L}, 4, 1")
    e(f"v_lshl_add_u32 v{t1}, v{t2}, 5, v{t1}")
    e(f"v_and_b32 v{t2}, 1, v{L}")
    e(f"v_lshl_add_u32 v{t1}, v{t2}, 4, v{t1}")
    e(f"v_bfe_u32 v{t2}, v{L}, 1, 1")
    e(f"v_lshl_add_u32 v{t1}, v{t2}, 3, v{t1}")
    e(f"v_add_u32 v{t1}, 65536, v{t1}")
    for k in range(4):
        e(f"v_xor_b32 v{t2}, {k}, v{t0}")
        e(f"v_lshl_add_u32 v{WA(k)}, v{t2}, 6, v{t1}")
    late = []
    A = late.append
    A(f"v_lshrrev_b32 v{t0}, 4, v{L}"); A(f"s_lshl_b32 s{sT(2)}, s{sWave}, 2"); A(f"v_add_u32 v{t2}, s{sT(2)}, v{t0}")
    A(f"v_lshlrev_b32 v{t2}, 8, v{t2}"); A(f"v_and_b32 v{t1}, 15, v{L}")
    A(f"v_lshl_add_u32 v{VDP(0)}, v{t1}, 4, v{t2}"); A(f"v_add_u32 v{VDP(1)}, 4096, v{VDP(0)}")
    A(f"v_and_b32 v{t0}, 16, v{L}"); A(f"v_xor_b32 v{KDP(0)}, v{t0}, v{VDP(0)}"); A(f"v_add_u32 v{KDP(1)}, 4096, v{KDP(0)}")
    A(f"v_add_u32 v{KD(0)}, 24576, v{KDP(0)}"); A(f"v_add_u32 v{KD(1)}, {24576-1056}, v{KDP(1)}")
    A(f"v_add_u32 v{VD(0)}, 8192, v{VDP(0)}"); A(f"v_add_u32 v{VD(1)}, {8192-1056}, v{VDP(1)}")
    A(f"v_and_b32 v{t0}, 3, v{L}"); A(f"v_bfe_u32 v{t1}, v{L}, 4, 1"); A(f"v_lshl_add_u32 v{t0}, v{t0}, 1, v{t1}")
    A(f"v_mul_u32_u24 v{t0}, 1056, v{t0}")
    A(f"v_bfe_u32 v{t1}, v{L}, 2, 2"); A(f"v_lshl_add_u32 v{t0}, v{t1}, 8, v{t0}")
    A(f"v_bfe_u32 v{t2}, v{L}, 2, 1"); A(f"v_lshrrev_b32 v{t1}, 5, v{L}"); A(f"v_xor_b32 v{t1}, v{t1}, v{t2}")
    A(f"v_lshl_add_u32 v{KA}, v{t1}, 4, v{t0}")
    A(f"v_bfe_u32 v{t0}, v{L}, 2, 2"); A(f"v_mul_u32_u24 v{t0}, 2112, v{t0}")
    A(f"v_lshrrev_b32 v{t1}, 5, v{L}"); A(f"v_lshl_add_u32 v{t0}, v{t1}, 8, v{t0}")
    A(f"v_bfe_u32 v{t1}, v{L}, 4, 1"); A(f"v_lshl_add_u32 v{t0}, v{t1}, 5, v{t0}")
    A(f"v_and_b32 v{t1}, 3, v{L}"); A(f"v_lshl_add_u32 v{t0}, v{t1}, 3, v{t0}")
    A(f"v_add_u32 v{VA0}, {VBASE}, v{t0}")
    A(f"v_bfe_u32 v{t0}, v{L}, 4, 1"); A(f"v_lshlrev_b32 v{t0}, 10, v{t0}")
    A(f"v_lshrrev_b32 v{t1}, 5, v{L}"); A(f"v_lshl_add_u32 v{t0}, v{t1}, 8, v{t0}")
    A(f"v_and_b32 v{t1}, 15, v{L}"); A(f"v_lshl_add_u32 v{t0}, v{t1}, 4, v{t0}")
    A(f"s_lshr_b32 s{sT(2)}, s{sWave}, 1"); A(f"s_lshl_b32 s{sT(2)}, s{sT(2)}, 20")
    A(f"s_and_b32 s{sT(3)}, s{sWave}, 1"); A(f"s_lshl_b32 s{sT(3)}, s{sT(3)}, 12"); A(f"s_add_u32 s{sT(2)}, s{sT(2)}, s{sT(3)}")
    A(f"v_add_u32 v{OD}, s{sT(2)}, v{t0}")
    A(f"s_mul_i32 s{sT(2)}, s{sWave}, {8*1280}")
    for p in range(5):
        A(f"v_add_u32 v{t0}, {p*64}, v{L}"); A(f"v_mul_u32_u24 v{t1}, 1639, v{t0}"); A(f"v_lshrrev_b32 v{t1}, 16, v{t1}")
        A(f"v_mul_u32_u24 v{t2}, {1280-640}, v{t1}"); A(f"v_lshl_add_u32 v{t2}, v{t0}, 4, v{t2}")
        A(f"v_add_u32 v{t2}, s{sT(2)}, v{t2}")
        A(f"v_subrev_u32 v{PD(p)}, {p*1024 if p < 4 else 0}, v{t2}")
    A(f"v_lshrrev_b32 v{t0}, 5, v{L}"); A(f"v_lshlrev_b32 v{t0}, 4, v{t0}")
    A(f"v_bfe_u32 v{t1}, v{L}, 2, 3"); A(f"v_add_u32 v{t0}, v{t0}, v{t1}")
    A(f"v_mul_u32_u24 v{t0}, 640, v{t0}"); A(f"v_and_b32 v{t1}, 3, v{L}"); A(f"v_lshl_add_u32 v{t0}, v{t1}, 3, v{t0}")
    A(f"s_mul_i32 s{sT(2)}, s{sWave}, 160"); A(f"v_add_u32 v{PA}, s{sT(2)}, v{t0}")
    A(f"s_mul_i32 s{sT(2)}, s{sWave}, 655360"); A(f"v_lshlrev_b32 v{t0}, 4, v{L}"); A(f"v_add_u32 v{PO}, s{sT(2)}, v{t0}")

    def pack_dma(ch):
        f = [f"s_mul_i32 s{sT(4)}, s{sWave}, 5120", f"s_mov_b32 m0, s{sT(4)}", f"s_mov_b32 s{sT(5)}, {ch*640}"]
        for p in range(4):
            f.append(lambda p=p: e.vm(f"buffer_load_dwordx4 v{PD(p)}, {s(sWO,4)}, s{sT(5)} offen offset:{p*1024} lds", ('p', ch)))
        f += [f"s_add_u32 m0, s{sT(4)}, 4096", "s_nop 0"]
        f.append(lambda: e.vm(f"buffer_load_dwordx4 v{PD(4)}, {s(sWO,4)}, s{sT(5)} offen lds", ('p', ch)))
        return f
    def pack_read(ch):
        return [lambda t=t, sec=sec: e.lds(f"ds_read_b64_tr_b16 {v(PF(t)+2*sec,2)}, v{PA} offset:{t*32+sec*5120}", ('pf', t)) for t in range(5) for sec in range(2)]
    def pack_store(ch):
        f = [f"s_mov_b32 s{sT(5)}, {ch*4*655360}", f"s_mov_b32 s{sT(4)}, {ch*4*655360+4096}", lambda: e.need([('pf', 4)])]
        for t in range(4):
            f.append(lambda t=t: e.vm(f"buffer_store_dwordx4 {v(PF(t),4)}, v{PO}, {s(sWP,4)}, s{sT(5)} offen offset:{t*1024}{pst}"))
        f.append(lambda: e.vm(f"buffer_store_dwordx4 {v(PF(4),4)}, v{PO}, {s(sWP,4)}, s{sT(4)} offen{pst}"))
        return f
    def pre(which, tile):
        base, stride, srd, reg = ((sWK, 1056, sK, KDP), (sWV, 1056, sV, VDP))[which == 'V']
        sl = tile * (KT if which == 'K' else VT)
        return [f"s_add_u32 m0, s{base}, {sl}", f"s_mov_b32 s{sT(6)}, {tile*8192}",
                lambda: e.vm(f"buffer_load_dwordx4 v{reg(0)}, {s(srd,4)}, s{sT(6)} offen{nt} lds", (which, tile)),
                f"s_add_u32 m0, s{base}, {sl+stride}", "s_nop 0",
                lambda: e.vm(f"buffer_load_dwordx4 v{reg(1)}, {s(srd,4)}, s{sT(6)} offen{nt} lds", (which, tile))]

    def q_reads(n):
        D, ks, st, ksp, fs = n // 4, n % 4, n // 2, n % 2, n % 2
        f = []
        for qt in range(2):
            f.append(lambda qt=qt: e.lds(f"ds_read_b128 {a(XF(fs,qt),4)}, v{XA(D%2,ks)} offset:{qt*4096}", ('x', fs, qt)))
        for d8 in range(8):
            for sec in range(2):
                off = (st % 4) * 16384 + (d8 // 4) * 256 + ksp * 8192 + sec * 2048
                f.append(lambda d8=d8, sec=sec, off=off: e.lds(f"ds_read_b64_tr_b16 {a(WF(fs,d8)+2*sec,2)}, v{WA(d8%4)} offset:{off}", ('w', fs, d8, sec)))
        return f
    def q_mfmas(n):
        fs = n % 2
        m = []
        for d8 in range(8):
            for qt in range(2):
                def f(d8=d8, qt=qt):
                    if qt == 0 and d8 % 2 == 0:
                        e.need([('x', fs, 0), ('x', fs, 1), ('w', fs, d8, 1), ('w', fs, d8 + 1, 1)])
                    acc = v(O_(d8 % 4, qt), 16) if d8 < 4 else a(O_(d8 % 4, qt), 16)
                    e(f"{MF32} {acc}, {a(WF(fs,d8),4)}, {a(XF(fs,qt),4)}, {acc if n else 0}")
                m.append(f)
        return m
    if not o['skip_q']:
        pt(1)
        emit_list(e, late[:o['late0']])
        pt(2)
        emit_list(e, x_dma(0, 0) + x_dma(0, 1) + w_dma(0) + w_dma(1))
        pt(3)
        stamp(1)
        n_ = e.vm_count([('x', 0), ('w', 0)])
        e(f"s_waitcnt vmcnt({n_})")
        pt(4)
        e("s_barrier")
        pt(5)
        emit_list(e, q_reads(0))
        extra = {n: [] for n in range(40)}
        sc = o['sched']
        def put(n, lo, hi, items):
            if not items: return
            usem0 = lambda its: any(isinstance(x, str) and 'm0' in x for x in its)
            if usem0(items):
                for l2, h2, it2 in extra[n]:
                    assert not usem0(it2) or hi <= l2 or h2 <= lo, (n, lo, hi, l2, h2)
            extra[n].append((lo, hi, items))
        def putk(kind, D, items):
            dn, lo, hi = sc[kind]
            put(4 * D + dn, lo, hi, items)
        put(0, 1, 8, x_dma(1, 0)); put(0, 8, 16, x_dma(1, 1))
        put(1, 1, 8, w_dma(2)); put(2, 1, 8, w_dma(3)); put(3, 8, 16, w_dma(4))
        put(4, 1, 8, x_dma(2, 0)); put(4, 8, 16, x_dma(2, 1)); put(5, 1, 8, w_dma(5))
        ta_left = 10 - o['ta0']
        pkd = {}
        if o['pack']:
            for ch in range(2):
                pd = pack_dma(ch)
                parts = [pd[:5], [pd[0], pd[1], pd[2]] + pd[5:7], [pd[0], pd[2]] + pd[7:]]
                for w_, part in zip(o['pk'][ch], parts): pkd.setdefault(w_, []).extend(part)
        for D in range(10):
            if D >= 2 and D + 1 <= 9: putk('xa', D, x_dma(D + 1, 0)); putk('xb', D, x_dma(D + 1, 1))
            if D >= 2 and 2 * D + 3 <= 19: putk('wa', D, w_dma(2 * D + 3))
            if D == 1: put(6, 8, 16, w_dma(6))
            elif D >= 2 and 2 * D + 4 <= 19: putk('wb', D, w_dma(2 * D + 4))
            bu = []
            if D < ta_left: bu += touch_a()
            bu += pkd.get(D, [])
            for _ in range(o['tbw'][D] if D < len(o['tbw']) else 0): bu += touch_b()
            if D == 0: put(2, 8, 16, bu)
            elif D == 1: put(5, 8, 16, bu)
            else: putk('bu', D, bu)
        bneed = {st: [('w', st + 1)] + ([('x', (st + 1) // 2)] if st % 2 == 1 else []) for st in range(19)}
        bneed[19] = []
        if o['pack']:
            for ch in range(2):
                st = 2 * o['pk'][ch][2] + 2
                bneed[st].append(('p', ch)); put(2 * st + 1, 4, 16, pack_read(ch)); put(2 * st + 2, 0, 16, pack_store(ch))
        kp = o['kpre']
        put(kp, 1, 16, pre('K', 0) + pre('K', 1))
        put(kp + 1, 1, 16, pre('K', 2))
        put(35, 1, 16, pre('K', 3))
        put(36, 1, 16, pre('K', 4) + pre('V', 0))
        put(37, 1, 16, pre('K', 5) + pre('V', 1))
        put(38, 1, 16, pre('K', 6) + pre('V', 2))
        put(39, 1, 16, pre('K', 7) + pre('V', 3))
        for k_, r_ in o['tbt']:
            for _ in range(r_): put(k_, 8, 16, touch_b())
        rest = late[o['late0']:]
        nq = (len(rest) + 1) // 2
        lateq = {0: rest[:nq], 1: rest[nq:]}
        for n in range(40):
            mf = q_mfmas(n)
            if o['qtrace'] and n % 2 == 0 and o['qt0'] + 1 <= n // 2 <= o['qt0'] + 13: e(f"s_memtime {s(sStamp(n//2-o['qt0']), 2)}")
            if n % 2 == 1:
                st = n // 2
                vmc = e.vm_count(bneed[st])
                e(f"s_waitcnt {'vmcnt(%d) ' % vmc if vmc is not None else ''}lgkmcnt(0)"); e.lgkm0()
                e("s_barrier")
            fill = {}
            if n in lateq: fill = merge(fill, spread(lateq[n], list(range(0, 16))))
            if n < 39: fill = merge(fill, spread(q_reads(n + 1), list(range(0, 12))))
            for lo, hi, items in extra[n]: fill = merge(fill, spread(items, list(range(lo, hi))))
            interleave(e, mf, fill)
    else:
        emit_list(e, late)
        for t in range(8): emit_list(e, pre('K', t))
        for t in range(4): emit_list(e, pre('V', t))
    stamp(2)
    emit_list(e, pre('V', 4))
    e("s_nop 7")
    if not o['skip_q']:
        for dtl in range(4):
            for qt in range(2):
                b = O_(dtl, qt)
                for i in range(0, 16, 2): e(f"v_pk_mul_f32 {v(b+i,2)}, {v(b+i,2)}, {s(sC,2)} op_sel_hi:[1,0]")
                for sx in range(2):
                    for jj in range(4):
                        e(f"v_cvt_pk_bf16_f32 v{QW(qt, dtl*2+sx)+jj}, v{b+sx*8+2*jj}, v{b+sx*8+2*jj+1}")
        emit_list(e, pre('V', 5))
        for dtl in range(4):
            for qt in range(2):
                b = O_(dtl, qt)
                for i in range(16): e(f"v_accvgpr_read_b32 v{i}, a{b+i}")
                for i in range(0, 16, 2): e(f"v_pk_mul_f32 {v(i,2)}, {v(i,2)}, {s(sC,2)} op_sel_hi:[1,0]")
                for jj in range(8): e(f"v_cvt_pk_bf16_f32 v{16+jj}, v{2*jj}, v{2*jj+1}")
                for jj in range(8): e(f"v_accvgpr_write_b32 a{QP(qt, dtl*2)+jj}, v{16+jj}")
    else:
        emit_list(e, pre('V', 5))
        e(f"v_lshlrev_b32 v{T(0)}, 4, v{LANE}")
        for i in range(16):
            e(f"s_mov_b32 s{sT(2)}, {i*1024}")
            e(f"buffer_load_dwordx4 {v(128+4*i,4)}, v{T(0)}, {s(sV,4)}, s{sT(2)} offen")
            e(f"buffer_load_dwordx4 {a(128+4*i,4)}, v{T(0)}, {s(sV,4)}, s{sT(2)} offen")
        e("s_waitcnt vmcnt(0)")
    e(f"s_mov_b32 s{sKV}, {5*8192}")
    e(f"s_mov_b32 s{sHead}, 0")
    n_ = e.vm_count([('K', 0), ('K', 1)])
    e(f"s_waitcnt vmcnt({n_})")
    e("s_barrier")
    stamp(3)

    def k_read(g, tile):
        if o['no_lds']: return lambda: e.tag.__setitem__(('k', g), 0)
        return lambda: e.lds(f"ds_read_b128 {a(KF(g),4)}, v{KA} offset:{(tile%8)*KT+g*32}", ('k', g))
    def v_read(g, tile):
        dt, sx = g // 2, g % 2
        sl = tile % 8
        if o['no_lds']: return [lambda: e.tag.__setitem__(('v', g), 0)]
        return [lambda sec=sec: e.lds(f"ds_read_b64_tr_b16 {a(VF(g)+2*sec,2)}, v{VA0} offset:{sl*VT+sx*1056+sec*512+dt*64}", ('v', g)) for sec in range(2)]
    def qk(g, qt, p, c0=None):
        d = v(S_(p, qt), 16)
        c = d if g else (c0 if c0 is not None else v(CI(qt), 16))
        return f"{MF32} {d}, {a(KF(g),4)}, {v(QW(qt,g),4)}, {c}"
    def pv(g, qt, p, first=False):
        dt, sx = g // 2, g % 2
        d = a(O_(dt, qt), 16)
        c = "0" if (first and sx == 0) else d
        return f"{MF32} {d}, {a(VF(g),4)}, {v(P_(p,qt,sx),4)}, {c}"
    sm_exp = lambda p, k: f"v_exp_f32 v{32*p+k}, v{32*p+k}"
    sm_add = lambda p, k: f"v_add_f32 v{L_(k//16)}, v{L_(k//16)}, v{32*p+k}"
    sm_cvt = lambda p, k: f"v_cvt_pk_bf16_f32 v{96+16*p+k//2}, v{32*p+k}, v{32*p+k+1}"
    def kdma(i):
        return [f"s_add_u32 m0, s{sWK}, {(i%8)*KT}",
                f"buffer_load_dwordx4 v{KD(0)}, {s(sK,4)}, s{sKV} offen{nt} lds",
                f"buffer_load_dwordx4 v{KD(1)}, {s(sK,4)}, s{sKV} offen offset:1056{nt} lds"]
    def vdma(i):
        return [f"s_add_u32 m0, s{sWV}, {((i+6)%8)*VT}",
                f"buffer_load_dwordx4 v{VD(0)}, {s(sV,4)}, s{sKV} offen{nt} lds",
                f"buffer_load_dwordx4 v{VD(1)}, {s(sV,4)}, s{sKV} offen offset:1056{nt} lds",
                f"s_add_u32 s{sKV}, s{sKV}, 8192"]

    def iteration(i, do_qk=True, do_pv=True, first_pv=False, carry=True, rd_lo=(1, 1), rd_hi=(1, 1), early_dma=True, tail=()):
        p = i % 2
        mfs = []
        for g in range(8):
            if o['fake16']:
                for qt in range(2):
                    for hh in range(2):
                        d = v(S_(1 - p, qt) + 8 * (g % 2) + 4 * hh, 4)
                        if do_qk: mfs.append(f"{MF16} {d}, {a(KF(g),4)}, {v(QW(qt,g^hh),4)}, {d if g >= 2 else v(CI(qt),4)}")
                for qt in range(2):
                    for hh in range(2):
                        d = a(O_(g // 2, qt) + 8 * (g % 2) + 4 * hh, 4)
                        if do_pv: mfs.append(f"{MF16} {d}, {a(VF(g),4)}, {v(P_(1-p,qt,hh),4)}, {'0' if first_pv else d}")
                continue
            if do_qk: mfs += [qk(g, 0, 1 - p), qk(g, 1, 1 - p)]
            if do_pv: mfs += [pv(g, 0, 1 - p, first_pv), pv(g, 1, 1 - p, first_pv)]
        ng = len(mfs); per = ng // 8; sc = ng / 32
        if o['fake16'] == 2 and do_pv:
            xtra = [f"{MF16} {v(228+4*k,4)}, {v(244,4)}, {v(P_(1-p,k//2,k%2),4)}, {v(228+4*k,4)}" for k in range(4)]
        else: xtra = []
        fixed = {k: [] for k in range(ng)}
        cap = {k: o['cap'] for k in range(ng)}
        def tags(g):
            return ([('k', g), ('k', g + 1)] if do_qk else []) + ([('v', g), ('v', g + 1)] if do_pv else [])
        endw = {}
        for g in (2, 6): endw[g * per - 1] = [lambda g=g: e.need(tags(g))]; cap[g * per - 1] -= 4
        endw[ng - 1] = list(tail)
        cap[ng - 1] -= 4 * (1 + len(tail))
        bg = 4 * per - 1
        def bar():
            if o['no_bar']: e.need(tags(4))
            else:
                e.need(tags(4), extra="vmcnt(16)"); e("s_barrier")
        fixed[bg].append((0, bar)); cap[bg] = o['barcap']
        if not o['no_dma']:
            g0, g1, g2, g3 = [int(x * sc) for x in o['dma_gaps']]
            kd = kdma(i)
            fixed[g0 - 1].append((4, kd[0])); fixed[g0].append((0, kd[1])); fixed[g1].append((0, kd[2]))
            cap[g0] = cap[g1] = o['dmacap']
            if early_dma:
                vd = vdma(i - 1)
                fixed[g2 - 1].append((4, vd[0])); fixed[g2].append((0, vd[1])); fixed[g3].append((0, vd[2])); fixed[g3 + 1].append((4, vd[3]))
                cap[g2] = cap[g3] = o['dmacap']
        for g in range(8):
            fr = (g + 4) % 8
            rds = []
            if g < 4:
                if rd_lo[0]: rds.append(k_read(fr, i + 1))
                if rd_lo[1]: rds += v_read(fr, i - 1)
            else:
                if rd_hi[0]: rds.append(k_read(fr, i + 2))
                if rd_hi[1]: rds += v_read(fr, i)
            ok = [k for k in range(g * per, (g + 1) * per) if cap[k] >= min(12, o['cap'])] or list(range(g * per, (g + 1) * per))
            ok = sorted(ok, key=lambda k: -(k % 2))
            slots = sorted(ok[n % len(ok)] for n in range(len(rds)))
            for k, r in zip(slots, rds): fixed[k].append((4, r))
        room = {k: cap[k] - sum(c for c, _ in fixed[k]) for k in range(ng)}
        sm = []
        if not o['no_valu']:
            if carry: sm += ([(4, sm_add(1 - p, 31), 0)] if o['fake16'] != 2 else []) + [(4, sm_cvt(1 - p, 30), 0)]
            for k in range(32):
                sm.append((8, sm_exp(p, k), None))
                if k >= 1 and o['fake16'] != 2: sm.append((4, sm_add(p, k - 1), None))
                if k >= 2 and k % 2 == 0: sm.append((4, sm_cvt(p, k - 2), None))
        tot = sum(c for c, _, _ in sm); troom = sum(max(r, 0) for r in room.values())
        scale = tot / troom if troom else 0
        fill = {k: [] for k in range(ng)}
        k = 0; cum_room = max(room[0], 0) * scale; cum = 0
        for c, it, force in sm:
            while force is None and k < ng - 1 and cum + c / 2 > cum_room:
                k += 1; cum_room += max(room[k], 0) * scale
            fill[k].append(it); cum += c
        out = {}
        for k in range(ng):
            fx = [it for _, it in fixed[k]]
            out[k] = (fx + fill[k] if k == bg else fill[k][:1] + fx + fill[k][1:]) + endw.get(k, [])
        for n_, x_ in enumerate(xtra):
            k = [per * 1 + 5, per * 3 + 5, per * 5 + 5, per * 6 + 5][n_]
            out[k] = out[k][:1] + [x_] + out[k][1:]
        interleave(e, mfs, out)

    e.label("K1_HEAD")
    if o['fake16']:
        for i in range(4): e(f"v_mov_b32 v{244+i}, 0x3f803f80")
        for i in range(16): e(f"v_mov_b32 v{228+i}, 0")
    e(f"v_mov_b32 v{L_(0)}, 0"); e(f"v_mov_b32 v{L_(1)}, 0")
    for g in range(8): k_read(g, 0)()
    mf = []
    for g in range(8):
        def first(g=g):
            e.need([('k', g)])
            e(qk(g, 0, 0, c0="0"))
        mf += [first, qk(g, 1, 0, c0="0")]
    interleave(e, mf, {2 * (g + 4) + 1: [k_read(g, 1)] for g in range(4)})
    e("s_nop 10")
    for qt in range(2):
        b = S_(0, qt); m = T(qt * 2); m2 = T(qt * 2 + 1)
        e(f"v_max3_f32 v{m}, v{b}, v{b+1}, v{b+2}")
        for i in range(3, 15, 2): e(f"v_max3_f32 v{m}, v{m}, v{b+i}, v{b+i+1}")
        e(f"v_max_f32 v{m}, v{m}, v{b+15}")
        e(f"v_mov_b32 v{m2}, v{m}")
    e("s_nop 1")
    for qt in range(2): e(f"v_permlane32_swap_b32 v{T(qt*2)}, v{T(qt*2+1)}")
    e("s_nop 1")
    for qt in range(2):
        m = T(qt * 2); m2 = T(qt * 2 + 1)
        e(f"v_max_f32 v{m}, v{m}, v{m2}")
        e(f"v_sub_f32 v{m}, 0, v{m}")
    for qt in range(2):
        for i in range(16): e(f"v_mov_b32 v{CI(qt)+i}, v{T(qt*2)}")
    for qt in range(2):
        for i in range(16): e(f"v_add_f32 v{S_(0,qt)+i}, v{S_(0,qt)+i}, v{T(qt*2)}")
    stamp(4)
    w0 = lambda q, vv: [lambda: e.need(([('k', 0), ('k', 1)] if q else []) + ([('v', 0), ('v', 1)] if vv else []))]
    emit_list(e, w0(1, 0))
    iteration(0, do_pv=False, carry=False, rd_lo=(1, 0), early_dma=False, tail=w0(1, 1))
    iteration(1, first_pv=True, tail=[f"s_mov_b32 s{sCnt}, 4"] + w0(1, 1))
    e.label("K1_ALOOP")
    snap = lambda: (e.lds_issued - e.lds_done, {k: e.lds_issued - x for k, x in e.tag.items() if k[0] in ('k', 'v')})
    st0 = snap()
    for i in (2, 3, 4, 5): iteration(i, tail=w0(1, 1))
    iteration(6, tail=[f"s_sub_u32 s{sCnt}, s{sCnt}, 1", f"s_cmp_eq_u32 s{sCnt}, 0"] + w0(1, 1) + ["s_cbranch_scc1 K1_AEXIT"])
    saved = (e.lds_issued, e.lds_done, dict(e.tag))
    iteration(7, tail=w0(1, 1)); iteration(8, tail=w0(1, 1))
    iteration(9, tail=w0(1, 1) + ["s_branch K1_ALOOP"])
    assert snap() == st0, (snap(), st0)
    e.lds_issued, e.lds_done, e.tag = saved
    e.label("K1_AEXIT")
    iteration(31, do_qk=False, rd_lo=(0, 1), rd_hi=(0, 1))
    if not o['no_valu']:
        e(sm_add(1, 31)); e(sm_cvt(1, 30))
    for g in range(4, 8): emit_list(e, v_read(g, 31))
    vd = vdma(31) if not o['no_dma'] else ["s_nop 0"] * 4
    mf = []
    for g in range(8):
        def first(g=g):
            e.need([('v', g)])
            e(pv(g, 0, 1))
        mf += [first, pv(g, 1, 1)]
    interleave(e, mf, {2: [vd[0]], 3: [vd[1]], 7: [vd[2]], 8: [vd[3]]})
    stamp(5)
    for qt in range(2): e(f"v_mov_b32 v{T(qt)}, v{L_(qt)}")
    e("s_nop 1")
    for qt in range(2): e(f"v_permlane32_swap_b32 v{L_(qt)}, v{T(qt)}")
    e("s_nop 1")
    for qt in range(2): e(f"v_add_f32 v{L_(qt)}, v{L_(qt)}, v{T(qt)}")
    for qt in range(2): e(f"v_rcp_f32 v{T(2+2*qt)}, v{L_(qt)}")
    e("s_nop 7")
    n = 0
    for dt in range(4):
        for qt in range(2):
            base = 32 * (n % 2); n += 1
            for i in range(16): e(f"v_accvgpr_read_b32 v{base+i}, a{O_(dt,qt)+i}")
            for i in range(0, 16, 2): e(f"v_pk_mul_f32 {v(base+i,2)}, {v(base+i,2)}, {v(T(2+2*qt),2)} op_sel_hi:[1,0]")
            for i in range(8): e(f"v_cvt_pk_bf16_f32 v{base+16+i}, v{base+2*i}, v{base+2*i+1}")
            if qt == 0: e(f"s_add_u32 s{sT(2)}, s{sOo}, {dt*8192}")
            e(f"buffer_store_dwordx4 {v(base+16,4)}, v{OD}, {s(sO,4)}, s{sT(2)} offen offset:{qt*2048}{ost}")
            e(f"buffer_store_dwordx4 {v(base+20,4)}, v{OD}, {s(sO,4)}, s{sT(2)} offen offset:{qt*2048+512}{ost}")
    stamp(6)
    e(f"s_cmp_lg_u32 s{sHead}, 0")
    e("s_cbranch_scc1 K1_FIN")
    e(f"s_mov_b32 s{sHead}, 1")
    if o['stamps'] and not o['qtrace'] and not o['ptrace']:
        e("s_waitcnt lgkmcnt(0)")
        for k in range(3): e(f"s_mov_b64 {s(sStamp(8+k),2)}, {s(sStamp(4+k),2)}")
    e(f"s_add_u32 s{sOo}, s{sOo}, 32768")
    for i in range(64): e(f"v_accvgpr_read_b32 v{128+i}, a{128+i}")
    e("s_branch K1_HEAD")
    e.label("K1_FIN")
    if o['stamps']:
        stamp(7)
        e(f"s_memrealtime {s(sStamp(15), 2)}")
        dump_stamps(e, sWave, sT(0), T(0), 96, 94, 64 << 20)
    e.label("K1_END")
    e("s_endpgm")
    return e

HEADER = open("concat_heads__gqa_block_cached__gqa_block_cached__near_ridge.s.ref").read().split("; Override launch")[0]

def build(o):
    from g2k2 import gen_k2
    e1 = gen_k1(o)
    errs = check_hazards(e1.lines, "k1")
    out = HEADER
    out += f"; @launch kernel={K1} grid=(256,1,1) block=(256,1,1) lds=163840\n"
    if not o['k1only']:
        out += f"; @launch kernel={K2} grid=(256,1,1) block=(256,1,1) lds={o['k2_r']*20480}\n"
    out += '.amdgcn_target "amdgcn-amd-amdhsa--gfx950"\n.text\n'
    out += e1.text()
    if not o['k1only']:
        e2 = gen_k2(o)
        errs += check_hazards(e2.lines, "k2")
        out += e2.text()
    out += kernel_desc(K1, 512, 256)
    if not o['k1only']:
        out += kernel_desc(K2, 256, 256)
    for x in errs[:40]: print(x, file=sys.stderr)
    return out

if __name__ == "__main__":
    o = dict(DEF)
    for kv in sys.argv[2:]:
        k, val = kv.split("=")
        assert k in o, k
        o[k] = val if isinstance(o[k], str) else json.loads(val)
    open(sys.argv[1], "w").write(build(o))
```

```python
from asmlib import *
K2 = "oproj_kernel"
MF16 = "v_mfma_f32_16x16x32_bf16"
WP_OFF = 32 << 20

def gen_k2(o):
    from g2 import dump_stamps, emit_list
    e = Emit()
    R = o['k2_r']
    assert R == 4
    sO, sW, sOut, sTc = 4, 8, 12, 16
    sWave, sCnt, sOo, sWo, sLb, sTo, sTstep = 20, 21, 22, 23, 24, 25, 26
    J, I, BLK, B, QH, NB, TMP, TMP2 = 28, 29, 30, 31, 32, 33, 34, 35
    LANE, OD, WD, RA, TO, TD, SD = 1, 2, 3, 4, 5, 6, 7
    t0, t1, t2, t3 = 8, 9, 10, 11
    WF = lambda st, nt: 16 + 20 * st + 4 * nt
    OF = lambda sl, ks, qq: 64 + 32 * sl + 8 * ks + 4 * qq
    ACC = lambda nt, qq: 192 + (nt * 2 + qq) * 4
    e.raw(f".globl {K2}\n.p2align 8\n.type {K2},@function")
    e.label(K2)
    e("s_cmp_ge_u32 s2, 256")
    e("s_cbranch_scc1 K2_END")
    e("s_load_dwordx2 s[44:45], s[0:1], 80")
    e("s_load_dwordx2 s[46:47], s[0:1], 96")
    def stamp(k, real=False):
        if o['stamps']: e(f"{'s_memrealtime' if real else 's_memtime'} {s(60+2*k,2)}")
    stamp(0); stamp(14, True)
    e(f"v_lshrrev_b32 v{t0}, 6, v0")
    e(f"v_and_b32 v{LANE}, 63, v0")
    e(f"v_readfirstlane_b32 s{sWave}, v{t0}")
    e(f"s_and_b32 s{J}, s2, 7")
    e(f"s_lshr_b32 s{I}, s2, 3")
    e(f"s_lshr_b32 s{BLK}, s{J}, 2")
    e(f"s_and_b32 s{B}, s{J}, 3")
    e(f"s_lshl_b32 s{B}, s{B}, 1")
    e(f"s_lshr_b32 s{TMP}, s{I}, 4")
    e(f"s_add_u32 s{B}, s{B}, s{TMP}")
    e(f"s_bfe_u32 s{QH}, s{I}, 0x10003")
    e(f"s_and_b32 s{NB}, s{I}, 7")
    L = LANE
    e(f"v_lshlrev_b32 v{RA}, 4, v{L}")
    e(f"s_lshl_b32 s{TMP}, s{sWave}, 11")
    e(f"v_add_u32 v{OD}, s{TMP}, v{RA}")
    e(f"s_mul_i32 s{sLb}, s{sWave}, 5120")
    e(f"v_add_u32 v{WD}, s{sLb}, v{RA}")
    e(f"s_lshl_b32 s{TMP}, s{BLK}, 3"); e(f"s_add_u32 s{TMP}, s{TMP}, s{B}")
    e(f"s_lshl_b32 s{TMP}, s{TMP}, 1"); e(f"s_add_u32 s{TMP}, s{TMP}, s{QH}")
    e(f"s_lshl_b32 s{TMP}, s{TMP}, 20")
    e(f"s_lshl_b32 s{TMP2}, s{BLK}, 3"); e(f"s_add_u32 s{TMP2}, s{TMP2}, s{NB}")
    e(f"s_mul_i32 s{TMP2}, s{TMP2}, 655360"); e(f"s_add_u32 s{TMP2}, s{TMP2}, {WP_OFF}")
    e("s_waitcnt lgkmcnt(0)")
    e(f"s_add_u32 s{sO}, s46, s{TMP}"); e(f"s_addc_u32 s{sO+1}, s47, 0")
    e(f"s_mov_b32 s{sO+2}, {1<<20}"); e(f"s_mov_b32 s{sO+3}, 0x20000")
    e(f"s_add_u32 s{sW}, s46, s{TMP2}"); e(f"s_addc_u32 s{sW+1}, s47, 0")
    e(f"s_mov_b32 s{sW+2}, 655360"); e(f"s_mov_b32 s{sW+3}, 0x20000")
    e(f"s_mov_b32 s{sOo}, 0"); e(f"s_mov_b32 s{sWo}, 0")
    def dma(slot):
        f = [f"s_add_u32 m0, s{sLb}, {slot*20480}"]
        for p in range(4):
            f.append(lambda p=p: e.vm(f"buffer_load_dwordx4 v{WD}, {s(sW,4)}, s{sWo} offen offset:{p*1024} lds"))
        f += [f"s_add_u32 m0, s{sLb}, {slot*20480+4096}", f"s_add_u32 s{sWo}, s{sWo}, 4096"]
        f.append(lambda: e.vm(f"buffer_load_dwordx4 v{WD}, {s(sW,4)}, s{sWo} offen lds"))
        f.append(f"s_add_u32 s{sWo}, s{sWo}, {20480-4096}")
        return f
    def oload(slot, ks):
        return [lambda qq=qq: e.vm(f"buffer_load_dwordx4 {v(OF(slot,ks,qq),4)}, v{OD}, {s(sO,4)}, s{sOo} offen offset:{qq*1024}") for qq in range(2)] + [f"s_add_u32 s{sOo}, s{sOo}, 8192"]
    tnt = " nt" if o['k2_tnt'] else ""
    def touch():
        if not o['k2_t']: return []
        return [lambda: e.vm(f"buffer_load_dword v{TD}, v{TO}, {s(sTc,4)}, s{sTo} offen{tnt}"), f"s_add_u32 s{sTo}, s{sTo}, s{sTstep}"]
    if not o['k2_tf']:
        d0 = dma(0); d0.insert(1, 's_nop 0')
        emit_list(e, d0)
        for ks in range(4): emit_list(e, oload(0, ks))
    e(f"s_cmp_eq_u32 s{sWave}, 0")
    for k in range(3): e(f"s_cselect_b32 s{sTc+k}, s{sO+k}, s{sW+k}")
    e(f"s_mov_b32 s{sTc+3}, 0x20000")
    e(f"s_movk_i32 s{sTstep}, 20480")
    e(f"s_cselect_b32 s{sTstep}, 32768, s{sTstep}")
    e(f"s_cselect_b32 s{TMP2}, {32 if o['k2_to'] else 0}, 40")
    e(f"s_lshl_b32 s{sTo}, s{NB}, 12")
    e(f"s_lshr_b32 s{TMP}, s{I}, 3"); e(f"s_mul_i32 s{TMP}, s{TMP}, 5120")
    e(f"s_cmp_eq_u32 s{sWave}, 0")
    e(f"s_cselect_b32 s{TMP}, s{sTo}, s{TMP}")
    e(f"s_cmp_gt_u32 s{sWave}, 1")
    e(f"s_cselect_b32 s{TMP2}, 0, s{TMP2}")
    e(f"v_lshlrev_b32 v{TO}, 7, v{L}")
    e(f"v_add_u32 v{TO}, s{TMP}, v{TO}")
    e(f"v_mov_b32 v{t0}, 0x40000000")
    e(f"v_cmp_gt_u32 vcc, s{TMP2}, v{L}")
    e(f"s_mul_i32 s{sTo}, s{sTstep}, {o['k2_t0']}")
    e("s_nop 0")
    e(f"v_cndmask_b32 v{TO}, v{t0}, v{TO}, vcc")
    for i in range(R - 1 + o['k2_t'] - o['k2_t0']): emit_list(e, touch())
    stamp(5)
    if o['k2_tf']:
        d0 = dma(0); d0.insert(1, 's_nop 0')
        emit_list(e, d0)
        for ks in range(4): emit_list(e, oload(0, ks))
    n0 = e.vm_issued if o['k2_tf'] else 13
    stamp(6)
    for st in range(1, R - 1):
        d = dma(st); d.insert(1, "s_nop 0")
        emit_list(e, d)
        for ks in range(4): emit_list(e, oload(st, ks))
    for ks in range(3): emit_list(e, oload(R - 1, ks))
    d = dma(R - 1)[:3]; d.insert(1, "s_nop 0")
    emit_list(e, d)
    e(f"s_lshl_b32 s{TMP}, s{B}, 1"); e(f"s_add_u32 s{TMP}, s{TMP}, s{QH}")
    e(f"s_mul_i32 s{TMP}, s{TMP}, {128*2560}")
    e(f"s_mul_i32 s{TMP2}, s{BLK}, 1280"); e(f"s_add_u32 s{TMP}, s{TMP}, s{TMP2}")
    e(f"s_mul_i32 s{TMP2}, s{NB}, 160"); e(f"s_add_u32 s{TMP}, s{TMP}, s{TMP2}")
    e(f"s_add_u32 s{sOut}, s44, s{TMP}"); e(f"s_addc_u32 s{sOut+1}, s45, 0")
    e(f"s_sub_u32 s{sOut+2}, {2048*2560}, s{TMP}"); e(f"s_mov_b32 s{sOut+3}, 0x20000")
    e(f"v_and_b32 v{t0}, 15, v{L}")
    e(f"s_lshl_b32 s{TMP}, s{sWave}, 5")
    e(f"v_add_u32 v{t0}, s{TMP}, v{t0}")
    e(f"v_mul_u32_u24 v{t0}, 2560, v{t0}")
    e(f"v_lshrrev_b32 v{t1}, 4, v{L}")
    e(f"v_lshl_add_u32 v{SD}, v{t1}, 3, v{t0}")
    for i in range(40): e(f"v_mov_b32 v{192+i}, 0")
    def reads(slot, ks, st):
        return [lambda nt=nt: e.lds(f"ds_read_b128 {v(WF(st,nt),4)}, v{RA} offset:{(slot%2)*20480+ks*5120+nt*1024}" if slot < 2 else
                                     f"ds_read_b128 {v(WF(st,nt),4)}, v{RA+8} offset:{(slot%2)*20480+ks*5120+nt*1024}", ('w', st, nt)) for nt in range(5)]
    e(f"v_add_u32 v{RA+8}, 40960, v{RA}")
    per = 13 + (1 if o['k2_t'] else 0)
    stamp(1)
    e(f"s_waitcnt vmcnt({e.vm_issued - n0})")
    e("s_barrier")
    stamp(2)
    emit_list(e, reads(0, 0, 0))
    e(f"s_mov_b32 s{sCnt}, 8")
    e.label("K2_LOOP")
    for t in range(4):
        for ks in range(4):
            st = ks % 2
            fill = {i: [] for i in range(10)}
            if ks == 3:
                vmw = o['k2_vm'] if o['k2_vm'] else (R - 2) * per
                if o['k2_noo'] or o['k2_nodma']: vmw = 2 * (per - 8 * o['k2_noo'] - 5 * o['k2_nodma'])
                pre = [f"s_waitcnt vmcnt({vmw}) lgkmcnt(0)"] + ([] if o['k2_nobar'] else ["s_barrier"])
                e.lgkm0()
                rd = reads((t + 1) % 4, 0, 1 - st)
            else:
                pre = []
                rd = reads(t, ks + 1, 1 - st)
            vmem = []
            pslot, pks = (t, ks - 1) if ks else ((t - 1) % 4, 3)
            if not o['k2_noo']: vmem += oload(pslot, pks)
            d = dma((t if ks == 3 else t - 1) % 4)
            if o['k2_nodma']: d = []
            if ks == 3: vmem += d[:3]
            elif ks == 0: vmem += d[3:5]
            elif ks == 1: vmem += d[5:]
            elif ks == 2: vmem += touch()
            for n, r in enumerate(rd): fill[1 + n].append(r)
            gaps = [2, 4, 5, 6, 7, 8, 9]
            for n, x in enumerate(vmem): fill[gaps[n * len(gaps) // max(len(vmem), 1)] if len(vmem) <= len(gaps) else min(2 + n, 9)].append(x)
            if t == 3 and ks == 3: fill[9] += [f"s_sub_u32 s{sCnt}, s{sCnt}, 1", f"s_cmp_lg_u32 s{sCnt}, 0"]
            i = 0
            for nt in range(5):
                for qq in range(2):
                    if i == 0:
                        if pre: emit_list(e, pre)
                        else: e.need([('w', st, 0), ('w', st, 1)])
                    if i == 4 and not pre: e.need([('w', st, 4)])
                    acc = v(ACC(nt, qq), 4)
                    e(f"{MF16} {acc}, {v(WF(st,nt),4)}, {v(OF(t,ks,qq),4)}, {acc}")
                    emit_list(e, fill[i])
                    i += 1
    e("s_cbranch_scc1 K2_LOOP")
    stamp(3)
    e("s_waitcnt vmcnt(0)")
    stamp(7)
    e("s_nop 7")
    e(f"s_mov_b32 s{TMP}, {16*2560}")
    for nt in range(5):
        for qq in range(2):
            ac = ACC(nt, qq)
            e(f"v_cvt_pk_bf16_f32 v{ac}, v{ac}, v{ac+1}")
            e(f"v_cvt_pk_bf16_f32 v{ac+1}, v{ac+2}, v{ac+3}")
            e(f"buffer_store_dwordx2 {v(ac,2)}, v{SD}, {s(sOut,4)}, {'s%d' % TMP if qq else '0'} offen offset:{nt*32}")
    if o['stamps']:
        stamp(4); stamp(15, True)
        dump_stamps(e, sWave, TMP, t0, 96, 46, 65 << 20)
    e.label("K2_END")
    e("s_endpgm")
    return e
```

```python
import sys, json
from asmlib import *

K1 = "attn_kernel"
K2 = "oproj_kernel"
MF = "v_mfma_f32_16x16x32_bf16"

DEF = dict(stamps=0, k1only=0, no_dma=0, no_bar=0, no_valu=0, no_lds=0, map=0, codepf=1, qtrace=0, ptrace=0, qt0=0,
           k2_t=0, k2_tnt=0, k2_r=4, k2_t0=0, k2_vm=0, k2_tf=1, k2_noo=0, k2_nodma=0, k2_nobar=0, k2_to=1,
           ost='', pst='', kvp='nt', pack=1, ta0=3, wsh=8, thr=0x4e800000, fb=1,
           sched=dict(xa=[-1, 2, 16], xb=[-1, 16, 32], wa=[0, 2, 16], bu=[0, 18, 32], wb=[2, 2, 20]), pk=[[0, 1, 2], [4, 5, 6]], kpre=33)

WP_OFF = 32 << 20
S_ = lambda p, kt, qt: 32 * p + 16 * kt + 4 * qt
P_ = lambda p, qt: 64 + 16 * p + 4 * qt
CI = lambda qt: 96 + 4 * qt
LS = lambda qt: 112 + 4 * qt
QW = lambda qt, ds: 128 + 16 * qt + 4 * ds
ONES = 192
KA, VA = 196, 197
DP = lambda e: 198 + e
KD = lambda e: 200 + e
VD = lambda e: 202 + e
LANE, OD, TA, FA, TD = 204, 205, 206, 207, 208
MT = lambda qt: 248 + qt
T = lambda k: 212 + k
XD = lambda e: 228 + e
WD = lambda e: 236 + e
XA = lambda sl, kk: 240 + 2 * sl + kk
WA = lambda ds: 244 + ds
PD = lambda p: 128 + p
PA, PO = 133, 134
PF = lambda t: 136 + 4 * t
ACC = lambda f, qt: ((f % 8) * 4 + qt) * 4
O_ = lambda dt, qt: (dt * 4 + qt) * 4
QP = lambda qt, ds: 128 + 16 * qt + 4 * ds
KF = lambda g: 192 + 4 * g
VF = lambda g: 224 + 4 * g
XF = lambda st, qt: 128 + 16 * st + 4 * qt
WF = lambda f: 160 + 4 * f
sX, sW, sK, sV, sO, sTA, sWO, sWP = 4, 8, 12, 16, 20, 24, 32, 36
sFb, sHb = 28, 29
sWave, sWK, sWV, sW4k, sW8k, sCnt, sKV, sHead, sC, sOo, sTAstep, sTAo = 40, 41, 42, 43, 44, 45, 46, 47, 48, 49, 50, 51
sT = lambda k: 53 + k
sStamp = lambda k: 60 + 2 * k
KT = 8448
VBASE = 8 * KT
FLAG = 16 * KT
XSLOT = [32640, 131072]
WBASE, WST = 65408, 16416
WSLOT = lambda st: WBASE + (st % 4) * WST

def emit_list(e, items):
    for f in items:
        f() if callable(f) else e(f)

def interleave(e, mf, fill):
    for i, m in enumerate(mf):
        m() if callable(m) else e(m)
        emit_list(e, fill.get(i, []))

def spread(items, gaps):
    d = {}
    n = len(items)
    for i, it in enumerate(items):
        d.setdefault(gaps[i * len(gaps) // n], []).append(it)
    return d

def merge(*ds):
    out = {}
    for d in ds:
        for k, vv in d.items():
            out.setdefault(k, []).extend(vv)
    return out

def dump_stamps(e, wave_sgpr, tmp_s, vt, srd, ws_lo, off):
    e("s_waitcnt lgkmcnt(0)")
    e("s_getreg_b32 s86, hwreg(HW_REG_XCC_ID)"); e("s_getreg_b32 s87, hwreg(HW_REG_HW_ID)")
    e(f"s_add_u32 s{srd}, s{ws_lo}, {off}"); e(f"s_addc_u32 s{srd+1}, s{ws_lo+1}, 0")
    e(f"s_mov_b32 s{srd+2}, {1<<20}"); e(f"s_mov_b32 s{srd+3}, 0x20000")
    e(f"s_lshl_b32 s{tmp_s}, s2, 2"); e(f"s_add_u32 s{tmp_s}, s{tmp_s}, s{wave_sgpr}"); e(f"s_lshl_b32 s{tmp_s}, s{tmp_s}, 7")
    e(f"v_mov_b32 v{vt}, 0")
    for k in range(16):
        e(f"v_mov_b32 v{vt+2}, s{60+2*k}"); e(f"v_mov_b32 v{vt+3}, s{61+2*k}")
        e(f"buffer_store_dwordx2 {v(vt+2,2)}, v{vt}, {s(srd,4)}, s{tmp_s} offen offset:{8*k}")
        e("s_nop 1")

def code_prefetch(e, base, label_end, vt, i_sgpr, st, lane):
    e(f"s_getpc_b64 {s(st,2)}")
    e.label(base)
    e(f"v_and_b32 v{vt}, 15, v{lane}")
    e(f"v_lshlrev_b32 v{vt}, 7, v{vt}")
    e(f"s_lshl_b32 s{st+2}, s{i_sgpr}, 11")
    e(f"v_add_u32 v{vt}, s{st+2}, v{vt}")
    e(f"v_min_u32 v{vt}, {label_end}, v{vt}")
    e.vm(f"global_load_dword v{TD}, v{vt}, {s(st,2)}")

def pol(x):
    return (" " + x.replace("+", " ")) if x else ""

def gen_k1(o):
    e = Emit()
    nt, ost, pst = pol(o['kvp']), pol(o['ost']), pol(o['pst'])
    def stamp(k):
        if o['stamps'] and not ((o['qtrace'] or o['ptrace']) and k != 0): e(f"s_memtime {s(sStamp(k), 2)}")
    L = LANE
    t0, t1, t2, t3 = T(0), T(1), T(2), T(3)
    J, I, BLK, B, H0, TMP = 96, 97, 98, 99, 100, 101
    e.raw(f".globl {K1}\n.p2align 8\n.type {K1},@function")
    e.label(K1)
    e("s_cmp_ge_u32 s2, 256")
    e("s_cbranch_scc1 K1_END")
    e("s_load_dwordx16 s[64:79], s[0:1], 0")
    e("s_load_dwordx4 s[80:83], s[0:1], 64")
    e("s_load_dwordx2 s[84:85], s[0:1], 96")
    stamp(0)
    if o['stamps']: e(f"s_memrealtime {s(sStamp(14), 2)}")
    e(f"v_lshrrev_b32 v{t0}, 6, v0")
    e(f"v_and_b32 v{L}, 63, v0")
    e(f"v_readfirstlane_b32 s{sWave}, v{t0}")
    e(f"s_and_b32 s{J}, s2, 7")
    e(f"s_lshr_b32 s{I}, s2, 3")
    e(f"s_lshr_b32 s{BLK}, s{J}, 2")
    e(f"s_and_b32 s{J}, s{J}, 3")
    e(f"s_lshl_b32 s{H0}, s{J}, 3"); e(f"s_and_b32 s{TMP}, s{I}, 3"); e(f"s_lshl_b32 s{TMP}, s{TMP}, 1")
    e(f"s_add_u32 s{H0}, s{H0}, s{TMP}"); e(f"s_lshr_b32 s{B}, s{I}, 2")
    big = 0x40000000
    e(f"v_mov_b32 v{t3}, {big}")
    e(f"s_and_b32 s{TMP}, s{I}, 3"); e(f"s_lshl_b32 s{TMP}, s{TMP}, 6")
    e(f"v_add_u32 v{t0}, s{TMP}, v{L}"); e(f"v_mul_u32_u24 v{t0}, 1280, v{t0}")
    e(f"v_lshrrev_b32 v{t1}, 2, v{L}"); e(f"s_lshl_b32 s{TMP}, s{B}, 3"); e(f"v_add_u32 v{t1}, s{TMP}, v{t1}")
    e(f"v_lshlrev_b32 v{t1}, 13, v{t1}"); e(f"v_and_b32 v{t2}, 3, v{L}"); e(f"v_lshl_add_u32 v{t1}, v{t2}, 7, v{t1}")
    e(f"v_cmp_gt_u32 vcc, 32, v{L}"); e("s_nop 1"); e(f"v_cndmask_b32 v{t1}, v{t3}, v{t1}, vcc")
    e(f"s_cmp_eq_u32 s{sWave}, 0"); e("s_cselect_b64 vcc, -1, 0"); e(f"v_cndmask_b32 v{TA}, v{t1}, v{t0}, vcc")
    e(f"s_cmp_gt_u32 s{sWave}, 1"); e("s_cselect_b64 vcc, -1, 0"); e(f"v_cndmask_b32 v{TA}, v{TA}, v{t3}, vcc")
    e(f"s_movk_i32 s{sTAstep}, 128")
    e(f"s_cmp_eq_u32 s{sWave}, 0")
    e(f"s_cselect_b32 s{sTAstep}, s{sTAstep}, {64*8192}")
    e(f"s_mov_b32 s{sTAo}, 0")
    e(f"s_mul_i32 s{sT(0)}, s{B}, 327680")
    e(f"s_lshl_b32 s{sT(1)}, s{H0}, 8")
    e(f"s_mov_b32 s{sX+2}, 327680"); e(f"s_mov_b32 s{sX+3}, 0x20000")
    e(f"s_sub_u32 s{sW+2}, {640*8192}, s{sT(1)}"); e(f"s_mov_b32 s{sW+3}, 0x20000")
    e(f"s_mov_b32 s{sTA+3}, 0x20000")
    e("s_waitcnt lgkmcnt(0)")
    e(f"s_cmp_eq_u32 s{BLK}, 0")
    e("s_cselect_b32 s64, s64, s74"); e("s_cselect_b32 s65, s65, s75")
    e("s_cselect_b32 s70, s70, s80"); e("s_cselect_b32 s71, s71, s81")
    e("s_cselect_b32 s66, s66, s76"); e("s_cselect_b32 s67, s67, s77")
    e("s_cselect_b32 s68, s68, s78"); e("s_cselect_b32 s69, s69, s79")
    e("s_cselect_b32 s72, s72, s82"); e("s_cselect_b32 s73, s73, s83")
    e(f"s_add_u32 s{sX}, s64, s{sT(0)}"); e(f"s_addc_u32 s{sX+1}, s65, 0")
    e(f"s_add_u32 s{sW}, s70, s{sT(1)}"); e(f"s_addc_u32 s{sW+1}, s71, 0")
    e(f"s_cmp_eq_u32 s{sWave}, 0")
    for k in range(3): e(f"s_cselect_b32 s{sTA+k}, s{sX+k}, s{sW+k}")

    def x_dma(D, half):
        f = [f"s_add_u32 m0, s{sW8k}, {XSLOT[D%2]+half*4096}", f"s_mov_b32 s{sT(0)}, {D*128}"]
        for k in range(4):
            f.append(lambda k=k: e.vm(f"buffer_load_dwordx4 v{XD(half*4+k)}, {s(sX,4)}, s{sT(0)} offen offset:{k*1024} lds", ('x', D)))
        return f
    def w_dma(st):
        f = [f"s_add_u32 m0, s{sW4k}, {WSLOT(st)}", f"s_mov_b32 s{sT(1)}, {st*32*8192}"]
        for k in range(4):
            f.append(lambda k=k: e.vm(f"buffer_load_dwordx4 v{WD(k)}, {s(sW,4)}, s{sT(1)} offen offset:{k*1024} lds", ('w', st)))
        return f
    def touch_a():
        return [lambda: e.vm(f"buffer_load_dword v{TD}, v{TA}, {s(sTA,4)}, s{sTAo} offen"), f"s_add_u32 s{sTAo}, s{sTAo}, s{sTAstep}"]
    pt = lambda k: e(f"s_memtime {s(sStamp(k), 2)}") if o['ptrace'] else None
    for _ in range(o['ta0']): emit_list(e, touch_a())
    if o['codepf']:
        code_prefetch(e, "K1_PFBASE", "K1_END-K1_PFBASE" if o["k1only"] else "K2_END-K1_PFBASE", t0, I, 56, L)
    pt(1)
    e(f"s_mul_i32 s{sW4k}, s{sWave}, {4096+o['wsh']}")
    e(f"s_lshl_b32 s{sW8k}, s{sWave}, 13")
    e(f"v_lshrrev_b32 v{t0}, 3, v{L}")
    e(f"s_lshl_b32 s{TMP}, s{sWave}, 6")
    e(f"v_add_u32 v{t0}, s{TMP}, v{t0}")
    e(f"v_mul_u32_u24 v{t0}, 1280, v{t0}")
    e(f"v_and_b32 v{t1}, 7, v{L}")
    e(f"v_lshrrev_b32 v{t2}, 4, v{L}")
    e(f"v_xor_b32 v{t1}, v{t1}, v{t2}")
    e(f"v_lshl_add_u32 v{XD(0)}, v{t1}, 4, v{t0}")
    e(f"v_xor_b32 v{t1}, 64, v{XD(0)}")
    for k in range(1, 8):
        e(f"v_add_u32 v{XD(k)}, {k*8*1280-(k%4)*1024}, v{XD(0) if k%2==0 else t1}")
    e(f"v_lshrrev_b32 v{t0}, 5, v{L}")
    e(f"v_and_b32 v{t1}, 31, v{L}")
    e(f"v_lshlrev_b32 v{t2}, 2, v{t0}")
    e(f"v_xor_b32 v{t1}, v{t1}, v{t2}")
    e(f"v_lshlrev_b32 v{t1}, 4, v{t1}")
    e(f"s_lshl_b32 s{TMP}, s{sWave}, 3")
    e(f"v_add_u32 v{t0}, s{TMP}, v{t0}")
    e(f"v_lshl_add_u32 v{WD(0)}, v{t0}, 13, v{t1}")
    e(f"v_xor_b32 v{t1}, 128, v{WD(0)}")
    for k in range(1, 4):
        e(f"v_add_u32 v{WD(k)}, {k*2*8192-k*1024}, v{WD(0) if k%2==0 else t1}")
    e(f"s_lshl_b32 s{TMP}, s{B}, 5"); e(f"s_add_u32 s{TMP}, s{TMP}, s{H0}"); e(f"s_lshl_b32 s{TMP}, s{TMP}, 18")
    e(f"s_add_u32 s{sK}, s66, s{TMP}"); e(f"s_addc_u32 s{sK+1}, s67, 0")
    e(f"s_mov_b32 s{sK+2}, 524288"); e(f"s_mov_b32 s{sK+3}, 0x20000")
    e(f"s_add_u32 s{sV}, s68, s{TMP}"); e(f"s_addc_u32 s{sV+1}, s69, 0")
    e(f"s_mov_b32 s{sV+2}, 524288"); e(f"s_mov_b32 s{sV+3}, 0x20000")
    e(f"s_lshl_b32 s{TMP}, s{BLK}, 3"); e(f"s_add_u32 s{TMP}, s{TMP}, s{B}"); e(f"s_lshl_b32 s{TMP}, s{TMP}, 21")
    e(f"s_add_u32 s{sO}, s84, s{TMP}"); e(f"s_addc_u32 s{sO+1}, s85, 0")
    e(f"s_mov_b32 s{sO+2}, {2<<20}"); e(f"s_mov_b32 s{sO+3}, 0x20000")
    e(f"s_lshl_b32 s{sOo}, s{H0}, 15")
    e(f"s_lshl_b32 s{TMP}, s{J}, 5"); e(f"s_add_u32 s{TMP}, s{TMP}, s{I}")
    e(f"s_mul_i32 s{sT(2)}, s{TMP}, 40960")
    e(f"s_add_u32 s{sWO}, s72, s{sT(2)}"); e(f"s_addc_u32 s{sWO+1}, s73, 0")
    e(f"s_mov_b32 s{sWO+2}, 40960"); e(f"s_mov_b32 s{sWO+3}, 0x20000")
    e(f"s_mul_i32 s{TMP}, s{TMP}, 5120")
    e(f"s_mul_i32 s{sT(2)}, s{BLK}, 5242880")
    e(f"s_add_u32 s{sT(2)}, s{sT(2)}, {WP_OFF}")
    e(f"s_add_u32 s{sT(2)}, s{sT(2)}, s{TMP}")
    e(f"s_add_u32 s{sWP}, s84, s{sT(2)}"); e(f"s_addc_u32 s{sWP+1}, s85, 0")
    e(f"s_sub_u32 s{sWP+2}, 5242880, s{TMP}"); e(f"s_mov_b32 s{sWP+3}, 0x20000")
    if o['stamps']:
        e(f"s_mov_b64 s[94:95], s[84:85]")
    e(f"s_mul_i32 s{sWK}, s{sWave}, {2*1056}")
    e(f"s_add_u32 s{sWV}, s{sWK}, {VBASE}")
    e(f"s_mov_b32 s{sC}, 0x3e0293ee")
    e(f"s_mov_b32 s{sFb}, 0"); e(f"s_mov_b32 s{sHb}, 0"); e(f"s_mov_b32 s{sHead}, 0")
    e(f"v_and_b32 v{t0}, 15, v{L}")
    e(f"v_lshlrev_b32 v{t0}, 7, v{t0}")
    e(f"v_add_u32 v{t0}, s{sW8k}, v{t0}")
    e(f"v_lshrrev_b32 v{t1}, 4, v{L}")
    e(f"v_bfe_u32 v{t2}, v{L}, 1, 3")
    e(f"v_xor_b32 v{t1}, v{t1}, v{t2}")
    e(f"v_lshl_add_u32 v{t0}, v{t1}, 4, v{t0}")
    for kk in range(2):
        e(f"v_xor_b32 v{t1}, {kk<<6}, v{t0}")
        for sl in range(2): e(f"v_add_u32 v{XA(sl,kk)}, {XSLOT[sl]}, v{t1}")
    e(f"v_bfe_u32 v{t0}, v{L}, 2, 2")
    e(f"v_lshrrev_b32 v{t1}, 4, v{L}")
    e(f"v_mul_u32_u24 v{t1}, {4096+o['wsh']}, v{t1}")
    e(f"v_lshl_add_u32 v{t1}, v{t0}, 9, v{t1}")
    e(f"v_and_b32 v{t2}, 3, v{L}")
    e(f"v_lshl_add_u32 v{t1}, v{t2}, 4, v{t1}")
    e(f"v_add_u32 v{t1}, {WBASE}, v{t1}")
    for k in range(4):
        e(f"v_xor_b32 v{t2}, {k}, v{t0}")
        e(f"v_lshl_add_u32 v{WA(k)}, v{t2}, 6, v{t1}")
    e(f"v_lshlrev_b32 v{t0}, 4, v{L}"); e(f"s_lshl_b32 s{sT(2)}, s{sWave}, 10")
    e(f"v_add_u32 v{DP(0)}, s{sT(2)}, v{t0}"); e(f"v_add_u32 v{DP(1)}, 4096, v{DP(0)}")
    e(f"v_add_u32 v{KD(0)}, 24576, v{DP(0)}"); e(f"v_add_u32 v{KD(1)}, {24576-1056}, v{DP(1)}")
    e(f"v_add_u32 v{VD(0)}, 8192, v{DP(0)}"); e(f"v_add_u32 v{VD(1)}, {8192-1056}, v{DP(1)}")
    e(f"s_lshr_b32 s{sT(2)}, s{sWave}, 1"); e(f"s_lshl_b32 s{sT(2)}, s{sT(2)}, 20")
    e(f"s_and_b32 s{sT(3)}, s{sWave}, 1"); e(f"s_lshl_b32 s{sT(3)}, s{sT(3)}, 12"); e(f"s_add_u32 s{sT(2)}, s{sT(2)}, s{sT(3)}")
    e(f"v_add_u32 v{OD}, s{sT(2)}, v{t0}")
    e(f"s_mul_i32 s{sT(2)}, s{sWave}, 655360"); e(f"v_add_u32 v{PO}, s{sT(2)}, v{t0}")
    e(f"v_and_b32 v{t0}, 3, v{L}"); e(f"v_bfe_u32 v{t1}, v{L}, 2, 1"); e(f"v_lshl_add_u32 v{t0}, v{t0}, 1, v{t1}")
    e(f"v_mul_u32_u24 v{t0}, 1056, v{t0}")
    e(f"v_bfe_u32 v{t1}, v{L}, 3, 1"); e(f"v_lshl_add_u32 v{t0}, v{t1}, 8, v{t0}")
    e(f"v_lshrrev_b32 v{t1}, 4, v{L}"); e(f"v_lshl_add_u32 v{KA}, v{t1}, 4, v{t0}")
    e(f"v_bfe_u32 v{t0}, v{L}, 2, 2"); e(f"v_bfe_u32 v{t1}, v{L}, 4, 1"); e(f"v_lshl_add_u32 v{t0}, v{t0}, 1, v{t1}")
    e(f"v_mul_u32_u24 v{t0}, 1056, v{t0}")
    e(f"v_lshrrev_b32 v{t1}, 5, v{L}"); e(f"v_lshl_add_u32 v{t0}, v{t1}, 8, v{t0}")
    e(f"v_and_b32 v{t1}, 3, v{L}"); e(f"v_lshl_add_u32 v{t0}, v{t1}, 3, v{t0}")
    e(f"v_add_u32 v{VA}, {VBASE}, v{t0}")
    e(f"s_mul_i32 s{sT(2)}, s{sWave}, {8*1280}")
    for p in range(5):
        e(f"v_add_u32 v{t0}, {p*64}, v{L}"); e(f"v_mul_u32_u24 v{t1}, 1639, v{t0}"); e(f"v_lshrrev_b32 v{t1}, 16, v{t1}")
        e(f"v_mul_u32_u24 v{t2}, {1280-640}, v{t1}"); e(f"v_lshl_add_u32 v{t2}, v{t0}, 4, v{t2}")
        e(f"v_add_u32 v{t2}, s{sT(2)}, v{t2}")
        e(f"v_subrev_u32 v{PD(p)}, {p*1024 if p < 4 else 0}, v{t2}")
    e(f"v_lshrrev_b32 v{t0}, 2, v{L}")
    e(f"v_mul_u32_u24 v{t0}, 640, v{t0}"); e(f"v_and_b32 v{t1}, 3, v{L}"); e(f"v_lshl_add_u32 v{t0}, v{t1}, 3, v{t0}")
    e(f"s_mul_i32 s{sT(2)}, s{sWave}, 160"); e(f"v_add_u32 v{PA}, s{sT(2)}, v{t0}")
    for i in range(4): e(f"v_mov_b32 v{ONES+i}, 0x3f803f80")
    for qt in range(4): e(f"v_mov_b32 v{MT(qt)}, 0xff800000")
    e(f"s_lshl_b32 s{sT(2)}, s{sWave}, 2"); e(f"s_add_u32 s{sT(2)}, s{sT(2)}, {FLAG}"); e(f"v_mov_b32 v{FA}, s{sT(2)}")

    def pack_dma(ch):
        f = [f"s_mul_i32 s{sT(4)}, s{sWave}, 5120", f"s_mov_b32 m0, s{sT(4)}", f"s_mov_b32 s{sT(5)}, {ch*640}"]
        for p in range(4):
            f.append(lambda p=p: e.vm(f"buffer_load_dwordx4 v{PD(p)}, {s(sWO,4)}, s{sT(5)} offen offset:{p*1024} lds", ('p', ch)))
        f += [f"s_add_u32 m0, s{sT(4)}, 4096", "s_nop 0"]
        f.append(lambda: e.vm(f"buffer_load_dwordx4 v{PD(4)}, {s(sWO,4)}, s{sT(5)} offen lds", ('p', ch)))
        return f
    def pack_read(ch):
        return [lambda t=t, sec=sec: e.lds(f"ds_read_b64_tr_b16 {v(PF(t)+2*sec,2)}, v{PA} offset:{t*32+sec*10240}", ('pf', t)) for t in range(5) for sec in range(2)]
    def pack_store(ch):
        f = [f"s_mov_b32 s{sT(5)}, {ch*4*655360}", f"s_mov_b32 s{sT(4)}, {ch*4*655360+4096}", lambda: e.need([('pf', 4)])]
        for t in range(4):
            f.append(lambda t=t: e.vm(f"buffer_store_dwordx4 {v(PF(t),4)}, v{PO}, {s(sWP,4)}, s{sT(5)} offen offset:{t*1024}{pst}"))
        f.append(lambda: e.vm(f"buffer_store_dwordx4 {v(PF(4),4)}, v{PO}, {s(sWP,4)}, s{sT(4)} offen{pst}"))
        return f
    def pre(which, tile):
        base, srd = ((sWK, sK), (sWV, sV))[which == 'V']
        sl = tile * KT
        return [f"s_add_u32 m0, s{base}, {sl}", f"s_add_u32 s{sT(6)}, s{sHb}, {tile*8192}",
                lambda: e.vm(f"buffer_load_dwordx4 v{DP(0)}, {s(srd,4)}, s{sT(6)} offen{nt} lds", (which, tile)),
                f"s_add_u32 m0, s{base}, {sl+1056}", "s_nop 0",
                lambda: e.vm(f"buffer_load_dwordx4 v{DP(1)}, {s(srd,4)}, s{sT(6)} offen{nt} lds", (which, tile))]
    PRE_ORDER = [('K', 0), ('K', 1), ('K', 2), ('K', 3), ('K', 4), ('V', 0), ('K', 5), ('V', 1), ('K', 6), ('V', 2), ('K', 7), ('V', 3), ('V', 4), ('V', 5)]

    def w_read(st, f):
        hd, ds, t = f // 8, (f % 8) // 2, f % 2
        return [lambda sec=sec: e.lds(f"ds_read_b64_tr_b16 {a(WF(f)+2*sec,2)}, v{WA(ds)} offset:{(st%4)*WST+sec*2048+hd*256+t*8}", ('w', f)) for sec in range(2)]
    def x_read(st):
        return [lambda qt=qt: e.lds(f"ds_read_b128 {a(XF(st%2,qt),4)}, v{XA((st//2)%2,st%2)} offset:{qt*2048}", ('x', st % 2, qt)) for qt in range(4)]
    def q_reads(n):
        st = n // 2
        if n % 2 == 0: return [r for f in range(8, 16) for r in w_read(st, f)]
        if st == 19: return []
        r0 = [r for f in range(0, 8) for r in w_read(st + 1, f)]
        return x_read(st + 1) + r0
    def q_mfmas(n):
        st = n // 2
        m = []
        for f in range(8 * (n % 2), 8 * (n % 2) + 8):
            for qt in range(4):
                def g(f=f, qt=qt):
                    if qt == 0 and f % 2 == 0:
                        e.need([('w', f), ('w', f + 1)] + ([('x', st % 2, 3)] if f == 0 else []))
                    acc = (v if f < 8 else a)(ACC(f, qt), 4)
                    e(f"{MF} {acc}, {a(WF(f),4)}, {a(XF(st%2,qt),4)}, {acc if st else 0}")
                m.append(g)
        return m
    pt(2)
    emit_list(e, x_dma(0, 0) + x_dma(0, 1) + w_dma(0) + w_dma(1))
    pt(3)
    stamp(1)
    n_ = e.vm_count([('x', 0), ('w', 0)])
    e(f"s_waitcnt vmcnt({n_})")
    pt(4)
    e("s_barrier")
    pt(5)
    emit_list(e, x_read(0) + [r for f in range(8) for r in w_read(0, f)])
    extra = {n: [] for n in range(40)}
    sc = o['sched']
    def put(n, lo, hi, items):
        if not items: return
        usem0 = lambda its: any(isinstance(x, str) and 'm0' in x for x in its)
        if usem0(items):
            for l2, h2, it2 in extra[n]:
                assert not usem0(it2) or hi <= l2 or h2 <= lo, (n, lo, hi, l2, h2)
        extra[n].append((lo, hi, items))
    def putk(kind, D, items):
        dn, lo, hi = sc[kind]
        put(4 * D + dn, lo, hi, items)
    put(0, 2, 16, x_dma(1, 0)); put(0, 16, 32, x_dma(1, 1))
    put(1, 2, 16, w_dma(2)); put(2, 2, 16, w_dma(3)); put(3, 16, 32, w_dma(4))
    put(4, 2, 16, x_dma(2, 0)); put(4, 16, 32, x_dma(2, 1)); put(5, 2, 16, w_dma(5))
    ta_left = 10 - o['ta0']
    pkd = {}
    if o['pack']:
        for ch in range(2):
            pd = pack_dma(ch)
            parts = [pd[:5], [pd[0], pd[1], pd[2]] + pd[5:7], [pd[0], pd[2]] + pd[7:]]
            for w_, part in zip(o['pk'][ch], parts): pkd.setdefault(w_, []).extend(part)
    for D in range(10):
        if D >= 2 and D + 1 <= 9: putk('xa', D, x_dma(D + 1, 0)); putk('xb', D, x_dma(D + 1, 1))
        if D >= 2 and 2 * D + 3 <= 19: putk('wa', D, w_dma(2 * D + 3))
        if D == 1: put(6, 16, 32, w_dma(6))
        elif D >= 2 and 2 * D + 4 <= 19: putk('wb', D, w_dma(2 * D + 4))
        bu = []
        if D < ta_left: bu += touch_a()
        bu += pkd.get(D, [])
        if D == 0: put(2, 16, 32, bu)
        elif D == 1: put(5, 16, 32, bu)
        else: putk('bu', D, bu)
    bneed = {st: [('w', st + 1)] + ([('x', (st + 1) // 2)] if st % 2 == 1 else []) for st in range(19)}
    bneed[19] = []
    if o['pack']:
        for ch in range(2):
            st = 2 * o['pk'][ch][2] + 2
            bneed[st].append(('p', ch)); put(2 * st + 1, 8, 32, pack_read(ch)); put(2 * st + 2, 0, 32, pack_store(ch))
    kp = o['kpre']
    put(kp, 2, 32, pre('K', 0) + pre('K', 1))
    put(kp + 1, 2, 32, pre('K', 2))
    put(35, 2, 32, pre('K', 3))
    put(36, 2, 32, pre('K', 4) + pre('V', 0))
    put(37, 2, 32, pre('K', 5) + pre('V', 1))
    put(38, 2, 32, pre('K', 6) + pre('V', 2))
    put(39, 2, 32, pre('K', 7) + pre('V', 3))
    for n in range(40):
        mf = q_mfmas(n)
        if o['qtrace'] and n % 2 == 0 and o['qt0'] + 1 <= n // 2 <= o['qt0'] + 13: e(f"s_memtime {s(sStamp(n//2-o['qt0']), 2)}")
        fill = {}
        if n % 2 == 1:
            st = n // 2
            def bar(st=st):
                vmc = e.vm_count(bneed[st])
                e(f"s_waitcnt {'vmcnt(%d) ' % vmc if vmc is not None else ''}lgkmcnt(0)"); e.lgkm0()
                e("s_barrier")
            bar()
        rd = q_reads(n)
        if rd: fill = merge(fill, spread(rd, list(range(0, 24 if n % 2 == 0 else 28))))
        for lo, hi, items in extra[n]: fill = merge(fill, spread(items, list(range(lo, hi))))
        interleave(e, mf, fill)
    stamp(2)
    emit_list(e, pre('V', 4))
    e("s_nop 3")
    for ds in range(4):
        for qt in range(4):
            for t in range(2):
                b = ACC(2 * ds + t, qt)
                for i in range(0, 4, 2): e(f"v_pk_mul_f32 {v(b+i,2)}, {v(b+i,2)}, {s(sC,2)} op_sel_hi:[1,0]")
            for t in range(2):
                b = ACC(2 * ds + t, qt)
                for i in range(2): e(f"v_cvt_pk_bf16_f32 v{QW(qt,ds)+2*t+i}, v{b+2*i}, v{b+2*i+1}")
    emit_list(e, pre('V', 5))
    for ds in range(4):
        for qp in range(2):
            for q2 in range(2):
                for t in range(2):
                    for i in range(4): e(f"v_accvgpr_read_b32 v{8*q2+4*t+i}, a{ACC(2*ds+t, 2*qp+q2)+i}")
            for i in range(0, 16, 2): e(f"v_pk_mul_f32 {v(i,2)}, {v(i,2)}, {s(sC,2)} op_sel_hi:[1,0]")
            for jj in range(8): e(f"v_cvt_pk_bf16_f32 v{16+jj}, v{2*jj}, v{2*jj+1}")
            for jj in range(8): e(f"v_accvgpr_write_b32 a{QP(2*qp+jj//4, ds)+jj%4}, v{16+jj}")
    e(f"s_mov_b32 s{sKV}, {5*8192}")
    n_ = e.vm_count([('K', 0), ('K', 1)])
    e(f"s_waitcnt vmcnt({n_})")
    e("s_barrier")
    stamp(3)

    def k_read(g, tile):
        if o['no_lds']: return lambda: e.tag.__setitem__(('k', g), 0)
        return lambda: e.lds(f"ds_read_b128 {a(KF(g),4)}, v{KA} offset:{(tile%8)*KT+(g%2)*512+(g//2)*64}", ('k', g))
    def v_read(g, tile):
        if o['no_lds']: return [lambda: e.tag.__setitem__(('v', g), 0)] * 2
        return [lambda sec=sec: e.lds(f"ds_read_b64_tr_b16 {a(VF(g)+2*sec,2)}, v{VA} offset:{(tile%8)*KT+sec*512+g*32}", ('v', g)) for sec in range(2)]
    def qk(g, qt, p, c0=None):
        d = v(S_(p, g % 2, qt), 4)
        c = d if g >= 2 else (c0 if c0 is not None else v(CI(qt), 4))
        return f"{MF} {d}, {a(KF(g),4)}, {v(QW(qt,g//2),4)}, {c}"
    def pv(g, qt, p, first=False):
        d = a(O_(g, qt), 4)
        return f"{MF} {d}, {a(VF(g),4)}, {v(P_(p,qt),4)}, {'0' if first else d}"
    def lsum(qt, p, first=False):
        d = v(LS(qt), 4)
        return f"{MF} {d}, {v(ONES,4)}, {v(P_(p,qt),4)}, {'0' if first else d}"
    sreg = lambda p, k: S_(p, (k // 4) % 2, k // 8) + k % 4
    sm_exp = lambda p, k: f"v_exp_f32 v{sreg(p,k)}, v{sreg(p,k)}"
    sm_cvt = lambda p, k: f"v_cvt_pk_bf16_f32 v{P_(p,0)+k//2}, v{sreg(p,k)}, v{sreg(p,k)+1}"
    def kdma(i):
        return [f"s_add_u32 m0, s{sWK}, {(i%8)*KT}",
                f"buffer_load_dwordx4 v{KD(0)}, {s(sK,4)}, s{sKV} offen{nt} lds",
                f"buffer_load_dwordx4 v{KD(1)}, {s(sK,4)}, s{sKV} offen offset:1056{nt} lds"]
    def vdma(i):
        return [f"s_add_u32 m0, s{sWV}, {((i+6)%8)*KT}",
                f"buffer_load_dwordx4 v{VD(0)}, {s(sV,4)}, s{sKV} offen{nt} lds",
                f"buffer_load_dwordx4 v{VD(1)}, {s(sV,4)}, s{sKV} offen offset:1056{nt} lds",
                f"s_add_u32 s{sKV}, s{sKV}, 8192"]

    def iteration(i, do_qk=True, do_pv=True, first_pv=False, carry=True, rd_lo=(1, 1), rd_hi=(1, 1), early_dma=True, tail=()):
        p = i % 2
        def tags(g):
            return ([('k', g), ('k', g + 1)] if do_qk else []) + ([('v', g), ('v', g + 1)] if do_pv else [])
        kd = kdma(i) if not o['no_dma'] else [None] * 3
        vd = vdma(i - 1) if (early_dma and not o['no_dma']) else [None] * 4
        val = not o['no_valu']
        for g in range(8):
            mfs = []
            if do_qk: mfs += [qk(g, qt, 1 - p) for qt in range(4)]
            if do_pv: mfs += [pv(g, qt, 1 - p, first_pv) for qt in range(4)]
            fr = (g + 4) % 8
            lo = g < 4
            kr = k_read(fr, i + 1 if lo else i + 2) if (rd_lo if lo else rd_hi)[0] else None
            vr = v_read(fr, i - 1 if lo else i) if (rd_lo if lo else rd_hi)[1] else [None, None]
            ex = [sm_exp(p, 4 * g + j) if val else None for j in range(4)]
            c_prev = (sm_cvt(p, 4 * g - 2) if g else (sm_cvt(1 - p, 30) if carry else None)) if val else None
            c_own = sm_cvt(p, 4 * g) if val else None
            sal = {0: vd[0], 3: vd[3], 4: kd[0]}.get(g)
            dm = {0: vd[1], 2: vd[2], 4: kd[1], 6: kd[2]}.get(g)
            if len(mfs) == 8:
                gaps = [[ex[0]], [kr, c_prev], [ex[1]], [vr[0], c_own], [ex[2]], [vr[1], sal], [ex[3]], [dm]]
            else:
                gaps = [[ex[0], kr, c_prev], [ex[1], vr[0], sal], [ex[2], c_own, vr[1]], [ex[3], dm]]
            if do_pv and g % 2 == 1:
                mfs.append(lsum(g // 2, 1 - p, first_pv)); gaps.append([])
            if g in (1, 5): gaps[-1].append(lambda g=g: e.need(tags(g + 1)))
            if g == 3:
                def bar():
                    if o['no_bar']: e.need(tags(4))
                    else:
                        e.need(tags(4), extra="vmcnt(16)"); e("s_barrier")
                gaps[-1].append(bar)
            if g == 7: gaps[-1] += list(tail)
            interleave(e, mfs, {k: [x for x in gp if x is not None] for k, gp in enumerate(gaps)})

    def rowmax(dst, first):
        for qt in range(4):
            a0, a1, m = S_(0, 0, qt), S_(0, 1, qt), dst(qt)
            if first: e(f"v_max3_f32 v{m}, v{a0}, v{a0+1}, v{MT(qt)}")
            else: e(f"v_max3_f32 v{m}, v{a0}, v{a0+1}, v{m}")
            e(f"v_max3_f32 v{m}, v{m}, v{a0+2}, v{a0+3}")
            e(f"v_max3_f32 v{m}, v{m}, v{a1}, v{a1+1}")
            e(f"v_max3_f32 v{m}, v{m}, v{a1+2}, v{a1+3}")
    def xlane_max(m, tmp):
        for op in ("v_permlane16_swap_b32", "v_permlane32_swap_b32"):
            for qt in range(4): e(f"v_mov_b32 v{tmp(qt)}, v{m(qt)}")
            for qt in range(4): e(f"{op} v{m(qt)}, v{tmp(qt)}")
            for qt in range(4): e(f"v_max_f32 v{m(qt)}, v{m(qt)}, v{tmp(qt)}")
    def qk0(look):
        for g in range(8): k_read(g, 0)()
        mf = []
        for g in range(8):
            def first(g=g):
                e.need([('k', g)])
                e(qk(g, 0, 0, c0="0"))
            mf += [first] + [qk(g, qt, 0, c0="0") for qt in range(1, 4)]
        interleave(e, mf, {4 * (g + 4) + 1: [k_read(g, 1)] for g in range(4)} if look else {})
        e("s_nop 4")

    e.label("K1_HEAD")
    qk0(True)
    M = lambda qt: T(qt)
    rowmax(M, True)
    xlane_max(M, lambda qt: T(4 + qt))
    for qt in range(4): e(f"v_sub_f32 v{M(qt)}, 0, v{M(qt)}")
    for qt in range(4):
        for i in range(4): e(f"v_mov_b32 v{CI(qt)+i}, v{M(qt)}")
    for k in range(32): e(f"v_add_f32 v{sreg(0,k)}, v{sreg(0,k)}, v{M(k//8)}")
    stamp(4)
    w0 = lambda q, vv: [lambda: e.need(([('k', 0), ('k', 1)] if q else []) + ([('v', 0), ('v', 1)] if vv else []))]
    emit_list(e, w0(1, 0))
    iteration(0, do_pv=False, carry=False, rd_lo=(1, 0), early_dma=False, tail=w0(1, 1))
    iteration(1, first_pv=True, tail=[f"s_mov_b32 s{sCnt}, 4"] + w0(1, 1))
    e.label("K1_ALOOP")
    snap = lambda: (e.lds_issued - e.lds_done, {k: e.lds_issued - x for k, x in e.tag.items() if k[0] in ('k', 'v')})
    st0 = snap()
    for i in (2, 3, 4): iteration(i, tail=w0(1, 1))
    iteration(5, tail=[f"s_sub_u32 s{sCnt}, s{sCnt}, 1"] + w0(1, 1))
    iteration(6, tail=[f"s_cmp_eq_u32 s{sCnt}, 0"] + w0(1, 1) + ["s_cbranch_scc1 K1_AEXIT"])
    saved = (e.lds_issued, e.lds_done, dict(e.tag))
    iteration(7, tail=w0(1, 1)); iteration(8, tail=w0(1, 1))
    iteration(9, tail=w0(1, 1) + ["s_branch K1_ALOOP"])
    assert snap() == st0, (snap(), st0)
    e.lds_issued, e.lds_done, e.tag = saved
    e.label("K1_AEXIT")
    iteration(31, do_qk=False, rd_lo=(0, 1), rd_hi=(0, 1))
    for g in range(4, 8): emit_list(e, v_read(g, 31))
    if not o['no_valu']: e(sm_cvt(1, 30))
    vd = vdma(31) if not o['no_dma'] else ["s_nop 0"] * 4
    mf = []
    for g in range(8):
        def first(g=g):
            e.need([('v', g)])
            e(pv(g, 0, 1))
        mf += [first] + [pv(g, qt, 1) for qt in range(1, 4)]
        if g == 0: mf += [lsum(qt, 1) for qt in range(4)]
    fl = {4: [vd[0]], 6: [vd[1]], 14: [vd[2]], 15: [vd[3]]}
    chk = []
    for qt in range(4):
        chk.append(f"v_cmp_gt_f32 vcc, s{sT(2)}, v{LS(qt)}")
        chk.append(f"s_and_b64 {s(sT(3),2)}, {s(sT(3),2)}, vcc")
    chk += [f"s_cmp_eq_u64 {s(sT(3),2)}, -1", f"s_cselect_b32 s{sT(2)}, 0, 1", f"s_andn2_b32 s{sT(2)}, s{sT(2)}, s{sFb}",
            f"v_mov_b32 v{T(8)}, s{sT(2)}", lambda: e.lds(f"ds_write_b32 v{FA}, v{T(8)}"), f"v_mov_b32 v{T(9)}, {FLAG}"]
    fl[12] = [f"s_mov_b32 s{sT(2)}, {o['thr']}", f"s_mov_b64 {s(sT(3),2)}, -1"]
    for n_, x_ in enumerate(chk): fl.setdefault(17 + n_, []).append(x_)
    for qt in range(4): fl.setdefault(31 + qt, []).append(f"v_rcp_f32 v{T(2*qt)}, v{LS(qt)}")
    interleave(e, mf, fl)
    stamp(5)
    e("s_nop 4")
    n = 0
    for u in range(4):
        e(f"s_add_u32 s{sT(2)}, s{sOo}, {u*8192}")
        for qp in range(2):
            base = 32 * (n % 2); n += 1
            for q2 in range(2):
                for t in range(2):
                    for i in range(4): e(f"v_accvgpr_read_b32 v{base+8*q2+4*t+i}, a{O_(2*u+t, 2*qp+q2)+i}")
            for i in range(0, 16, 2): e(f"v_pk_mul_f32 {v(base+i,2)}, {v(base+i,2)}, {v(T(2*(2*qp+i//8)),2)} op_sel_hi:[1,0]")
            for i in range(8): e(f"v_cvt_pk_bf16_f32 v{base+16+i}, v{base+2*i}, v{base+2*i+1}")
            for q2 in range(2):
                e(f"buffer_store_dwordx4 {v(base+16+4*q2,4)}, v{OD}, {s(sO,4)}, s{sT(2)} offen offset:{(2*qp+q2)*1024}{ost}")
    e("s_waitcnt lgkmcnt(0)"); e.lgkm0()
    e("s_barrier")
    e(f"ds_read_b128 {v(T(12),4)}, v{T(9)}")
    for qt in range(4): e(f"v_mov_b32 v{MT(qt)}, 0xff800000")
    e("s_waitcnt lgkmcnt(0)")
    e(f"v_or3_b32 v{T(12)}, v{T(12)}, v{T(13)}, v{T(14)}")
    e(f"v_or_b32 v{T(12)}, v{T(12)}, v{T(15)}")
    e("s_nop 0")
    e(f"v_readfirstlane_b32 s{sT(2)}, v{T(12)}")
    e(f"s_cmp_lg_u32 s{sT(2)}, 0")
    if o['fb']: e("s_cbranch_scc1 K1_FB")
    stamp(6)
    e(f"s_mov_b32 s{sFb}, 0")
    e(f"s_cmp_lg_u32 s{sHead}, 0")
    e("s_cbranch_scc1 K1_FIN")
    e(f"s_mov_b32 s{sHead}, 1")
    e(f"s_mov_b32 s{sHb}, 262144")
    if o['stamps'] and not o['qtrace'] and not o['ptrace']:
        e("s_waitcnt lgkmcnt(0)")
        for k in range(3): e(f"s_mov_b64 {s(sStamp(8+k),2)}, {s(sStamp(4+k),2)}")
    e(f"s_add_u32 s{sOo}, s{sOo}, 32768")
    for i in range(64): e(f"v_accvgpr_read_b32 v{128+i}, a{128+i}")
    e("s_branch K1_HEAD")
    e.label("K1_FB")
    e("s_waitcnt vmcnt(0)")
    e("s_barrier")
    e(f"s_mov_b32 s{sCnt}, 32")
    e(f"s_mov_b32 s{sKV}, s{sHb}")
    e.label("K1_FBL")
    e(f"s_mov_b32 m0, s{sWK}"); e("s_nop 0")
    e(f"buffer_load_dwordx4 v{DP(0)}, {s(sK,4)}, s{sKV} offen lds")
    e(f"s_add_u32 m0, s{sWK}, 1056"); e("s_nop 0")
    e(f"buffer_load_dwordx4 v{DP(1)}, {s(sK,4)}, s{sKV} offen lds")
    e("s_waitcnt vmcnt(0)")
    e("s_barrier")
    qk0(False)
    e("s_barrier")
    e("s_nop 4")
    rowmax(MT, False)
    e(f"s_add_u32 s{sKV}, s{sKV}, 8192")
    e(f"s_sub_u32 s{sCnt}, s{sCnt}, 1")
    e(f"s_cmp_lg_u32 s{sCnt}, 0")
    e("s_cbranch_scc1 K1_FBL")
    for wh, tl in PRE_ORDER: emit_list(e, pre(wh, tl))
    e(f"s_add_u32 s{sKV}, s{sHb}, {5*8192}")
    e(f"s_mov_b32 s{sFb}, 1")
    e("s_waitcnt vmcnt(0)")
    e("s_barrier")
    e("s_branch K1_HEAD")
    e.label("K1_FIN")
    if o['stamps']:
        stamp(7)
        e(f"s_memrealtime {s(sStamp(15), 2)}")
        dump_stamps(e, sWave, sT(0), T(0), 96, 94, 64 << 20)
    e.label("K1_END")
    e("s_endpgm")
    return e

HEADER = open("concat_heads__gqa_block_cached__gqa_block_cached__near_ridge.s.ref").read().split("; Override launch")[0]

def build(o):
    from g2k2 import gen_k2
    e1 = gen_k1(o)
    errs = check_hazards(e1.lines, "k1")
    out = HEADER
    out += f"; @launch kernel={K1} grid=(256,1,1) block=(256,1,1) lds=163840\n"
    if not o['k1only']:
        out += f"; @launch kernel={K2} grid=(256,1,1) block=(256,1,1) lds={o['k2_r']*20480}\n"
    out += '.amdgcn_target "amdgcn-amd-amdhsa--gfx950"\n.text\n'
    out += e1.text()
    if not o['k1only']:
        e2 = gen_k2(o)
        errs += check_hazards(e2.lines, "k2")
        out += e2.text()
    out += kernel_desc(K1, 512, 256)
    if not o['k1only']:
        out += kernel_desc(K2, 256, 256)
    for x in errs[:40]: print(x, file=sys.stderr)
    return out

if __name__ == "__main__":
    o = dict(DEF)
    for kv in sys.argv[2:]:
        k, val = kv.split("=")
        assert k in o, k
        o[k] = val if isinstance(o[k], str) else json.loads(val)
    open(sys.argv[1], "w").write(build(o))
```

```python
import re

def v(i, n=1):
    return f"v{i}" if n == 1 else f"v[{i}:{i+n-1}]"
def a(i, n=1):
    return f"a{i}" if n == 1 else f"a[{i}:{i+n-1}]"
def s(i, n=1):
    return f"s{i}" if n == 1 else f"s[{i}:{i+n-1}]"

class R:
    def __init__(self, kind, idx, n=1):
        self.kind, self.idx, self.n = kind, idx, n
    def __str__(self):
        return (v if self.kind == 'v' else a)(self.idx, self.n)
    def sub(self, off, n=1):
        assert off + n <= self.n, (off, n, self.n)
        return R(self.kind, self.idx + off, n)

_REG = re.compile(r"\b([vas])(?:(\d+)|\[(\d+):(\d+)\])")
def regs_of(tok):
    out = set()
    for m in _REG.finditer(tok):
        k = m.group(1)
        if m.group(2) is not None:
            out.add((k, int(m.group(2))))
        else:
            for i in range(int(m.group(3)), int(m.group(4)) + 1):
                out.add((k, i))
    if re.search(r"\bvcc\b", tok): out.add(('s', 'vcc'))
    if re.search(r"\bm0\b", tok): out.add(('s', 'm0'))
    if re.search(r"\bexec\b", tok): out.add(('s', 'exec'))
    return out

TRANS = ("v_exp_f32", "v_log_f32", "v_rcp_f32", "v_rsq_f32", "v_sqrt_f32")

def parse(line):
    t = line.split(";")[0].split("//")[0].strip()
    if not t or t.endswith(":") or t.startswith("."):
        return None
    parts = t.split(None, 1)
    op = parts[0]
    ops = [x.strip() for x in parts[1].split(",")] if len(parts) > 1 else []
    dst, src = set(), set()
    if op.startswith("v_mfma"):
        dst = regs_of(ops[0]); src = regs_of(ops[1]) | regs_of(ops[2]) | regs_of(ops[3])
    elif op.startswith("v_cmp"):
        dst = regs_of(ops[0]); src = set().union(*[regs_of(x) for x in ops[1:]])
    elif op.startswith("v_permlane32_swap") or op.startswith("v_permlane16_swap"):
        dst = regs_of(ops[0]) | regs_of(ops[1]); src = set(dst)
    elif op.startswith("v_fmac") or op.startswith("v_pk_fmac"):
        dst = regs_of(ops[0]); src = set().union(*[regs_of(x) for x in ops])
    elif op.startswith("v_"):
        dst = regs_of(ops[0]); src = set().union(*[regs_of(x) for x in ops[1:]]) if len(ops) > 1 else set()
    elif op.startswith("ds_read"):
        dst = regs_of(ops[0]); src = regs_of(ops[1])
    elif op.startswith("ds_write"):
        src = set().union(*[regs_of(x) for x in ops])
    elif op.startswith("buffer_load") or op.startswith("global_load"):
        if t.rstrip().endswith("lds"):
            src = set().union(*[regs_of(x) for x in ops]) | {('s', 'm0')}
        else:
            dst = regs_of(ops[0]); src = set().union(*[regs_of(x) for x in ops[1:]])
    elif op.startswith("buffer_store") or op.startswith("global_store") or op.startswith("global_atomic") or op.startswith("buffer_atomic"):
        src = set().union(*[regs_of(x) for x in ops])
    elif op.startswith("s_"):
        if op.startswith(("s_cmp", "s_cbranch", "s_branch", "s_waitcnt", "s_barrier", "s_nop", "s_endpgm", "s_setprio", "s_sleep")):
            src = set().union(*[regs_of(x) for x in ops]) if ops else set()
        else:
            dst = regs_of(ops[0]) if ops else set()
            src = set().union(*[regs_of(x) for x in ops[1:]]) if len(ops) > 1 else set()
    return op, dst, src, ops

def mfma_passes(op):
    return 8 if "32x32x16" in op else 4

def check_hazards(lines, name=""):
    ins = []
    for ln in lines:
        p = parse(ln)
        if p: ins.append((ln.strip(), p))
    errs = []
    n = len(ins)
    for i, (txt, (op, dst, src, ops)) in enumerate(ins):
        isvalu = op.startswith("v_") and not op.startswith("v_mfma")
        ismfma = op.startswith("v_mfma")
        states = 0
        for j in range(i + 1, min(n, i + 24)):
            t2, (op2, dst2, src2, ops2) = ins[j]
            v2 = op2.startswith("v_") and not op2.startswith("v_mfma")
            m2 = op2.startswith("v_mfma")
            mem2 = op2.startswith(("ds_", "buffer_", "global_"))
            need = 0
            if isvalu:
                vd = {r for r in dst if r[0] in 'va'}
                sd = {r for r in dst if r[0] == 's'}
                if m2 and (vd & src2): need = max(need, 2)
                if op2.startswith("v_permlane") and (vd & src2): need = max(need, 2)
                if op2.startswith(("v_readfirstlane", "v_readlane")) and (vd & src2): need = max(need, 1)
                if op.split("_e")[0] in TRANS and v2 and (vd & src2) and op2.split("_e")[0] not in TRANS: need = max(need, 1)
                if op.split("_e")[0] in TRANS and v2 and (vd & src2): need = max(need, 1)
                if sd and v2 and (sd & src2): need = max(need, 2)
                if sd and op2.startswith(("buffer_", "global_")) and (sd & src2): need = max(need, 5)
                if "dpp" in t2 and (vd & src2): need = max(need, 2)
            if ismfma:
                ps = mfma_passes(op)
                big = {4: 8, 8: 12}[ps]
                if m2:
                    cA = regs_of(ops2[1]) | regs_of(ops2[2]); cC = regs_of(ops2[3])
                    if dst & cA: need = max(need, big)
                    if dst & cC and not (dst == cC and mfma_passes(op2) == ps): need = max(need, big - 2)
                    if (dst & dst2) and not (dst == dst2): need = max(need, big - 2)
                elif v2:
                    if dst & (src2 | dst2): need = max(need, big)
                    cC = regs_of(ops[3])
                    if cC & dst2: need = max(need, {4: 3, 8: 7}[ps])
                elif mem2:
                    if dst & (src2 | dst2): need = max(need, big)
            if op.startswith("s_") and ('s', 'm0') in dst and ('s', 'm0') in src2 and mem2: need = max(need, 1)
            if op.startswith(("buffer_store_dwordx4", "global_store_dwordx4", "buffer_store_dwordx3", "ds_write_b128")) and op.startswith(("buffer", "global")):
                data = regs_of(ops[0]) if op.startswith("buffer") else regs_of(ops[1])
                if (v2 or mem2) and (data & dst2): need = max(need, 2)
            if need > states:
                errs.append(f"{name}: hazard need {need} have {states}: [{i}] {txt}  ->  [{j}] {t2}")
            if op2 == "s_nop":
                states += int(ops2[0], 0) + 1
            else:
                states += 1
            if states >= 20: break
    return errs

class Emit:
    def __init__(self):
        self.lines = []
        self.lds_issued = 0
        self.lds_done = 0
        self.tag = {}
    def __call__(self, txt):
        self.lines.append("    " + txt)
    def label(self, l):
        self.lines.append(l + ":")
    def c(self, txt):
        self.lines.append("    ; " + txt)
    def raw(self, txt):
        self.lines.append(txt)
    def lds(self, txt, tag=None):
        self.lds_issued += 1
        if tag is not None: self.tag[tag] = self.lds_issued
        self(txt)
    def need(self, tags, extra=""):
        idx = max([self.tag[t] for t in tags], default=0)
        if idx <= self.lds_done:
            if extra: self("s_waitcnt " + extra)
            return
        n = self.lds_issued - idx
        n = min(n, 15)
        self.lds_done = self.lds_issued - n
        self(f"s_waitcnt {extra + ' ' if extra else ''}lgkmcnt({n})")
    vm_issued = 0
    vm_done = 0
    count_stores = False
    def vm(self, txt, tag=None):
        if "_store_" in txt and not self.count_stores:
            self(txt); return
        self.vm_issued += 1
        if tag is not None: self.tag[('vm',) + tuple(tag)] = self.vm_issued
        if txt: self(txt)
    def vm_count(self, tags):
        idx = max([self.tag[('vm',) + tuple(t)] for t in tags], default=0)
        if idx <= self.vm_done: return None
        n = min(self.vm_issued - idx, 63)
        self.vm_done = self.vm_issued - n
        return n
    def lgkm0(self):
        self.lds_done = self.lds_issued
    def text(self):
        return "\n".join(self.lines) + "\n"

def kernel_desc(name, vgpr, accum, sgpr=102):
    return f""".section .rodata,"a"
.p2align 6
.amdhsa_kernel {name}
  .amdhsa_next_free_vgpr {vgpr}
  .amdhsa_next_free_sgpr {sgpr}
  .amdhsa_accum_offset {accum}
  .amdhsa_group_segment_fixed_size 0
  .amdhsa_kernarg_size 104
  .amdhsa_user_sgpr_count 2
  .amdhsa_user_sgpr_kernarg_segment_ptr 1
  .amdhsa_system_sgpr_workgroup_id_x 1
.end_amdhsa_kernel
"""
```

```python
import sys, json
from asmlib import *

K1 = "attn_kernel"
K2 = "oproj_kernel"
MF = "v_mfma_f32_16x16x32_bf16"

DEF = dict(stamps=0, k1only=0, no_dma=0, no_bar=0, no_valu=0, no_lds=0, map=0, codepf=1, qtrace=0, ptrace=0, qt0=0,
           k2_t=0, k2_tnt=0, k2_r=4, k2_t0=0, k2_vm=0, k2_tf=1, k2_noo=0, k2_nodma=0, k2_nobar=0, k2_to=1,
           ost='sc1', pst='sc1', opol='sc1', wpol='sc1', ecap=16, vmk=10, gate=24, pubst=2, spin=20000, pcl=3, cpf2=1, rsp=1, pkl=[[36, 37], [38, 39]], nb=16, pcp=[25, 1], pcn=1, xsp=12, xl=1, rate=0, lmin=3, r0=0, dbg='', la=4, tvm=99, lpv=99, est=0, ebuf=2, vmk0=10, spk=99, otr=[], kvp='nt', pack=1, ta0=0, wsh=8, thr=0x4e800000, fb=1,
           sched=dict(xa=[-1, 2, 16], xb=[-1, 16, 32], wa=[0, 2, 16], bu=[0, 18, 32], wb=[2, 2, 20]), pk=[[1, 2, 3], [5, 6, 7]], ta1=2, ta_nt=0, d0nt=0, tskip=1, early=1,
           pre=[[33, ['K0', 'V0']], [35, ['K1', 'K2']], [36, ['K3', 'K4']], [37, ['V1', 'K5']], [38, ['V2', 'K6']], [39, ['V3', 'K7']]])

WP_OFF = 32 << 20
EX_OFF = 44 << 20
FL_OFF = 56 << 20
S_ = lambda p, kt, qt: 32 * p + 16 * kt + 4 * qt
P_ = lambda p, qt: 64 + 16 * p + 4 * qt
CI = lambda qt: 96 + 4 * qt
LS = lambda qt: 112 + 4 * qt
QW = lambda qt, ds: 128 + 16 * qt + 4 * ds
ONES = 192
KA, VA = 196, 197
DP = lambda e: 198 + e
KD = lambda e: 200 + e
VD = lambda e: 202 + e
LANE, OD, TA, FA, TD = 204, 205, 206, 207, 208
MT = lambda qt: 248 + qt
T = lambda k: 212 + k
XD = lambda e: 228 + e
WD = lambda e: 236 + e
XA = lambda sl, kk: 240 + 2 * sl + kk
WA = lambda ds: 244 + ds
PD = lambda p: 128 + p
PA, PO = 133, 134
PF = lambda t, ch=0: 136 + 20 * ch + 4 * t
CLA = 180
SN, FO, PL = 254, 209, 210
OD2, WD2, RK, RS, SD, EXS = 228, 229, 231, 234, 237, 238
AC2 = lambda f, qq: (2 * f + qq) * 4
W2 = lambda st, f: a(192 + 4 * f, 4) if st == 0 else (a(232 + 4 * f, 4) if f < 6 else v(96 + 4 * (f - 6), 4))
OF2 = lambda k, qq: (a if (k // 8) % 2 == 0 else v)(128 + 8 * (k % 8) + 4 * qq, 4)
WPERM = [7, 0, 1, 4, 2, 3, 5, 6]
ACC = lambda f, qt: ((f % 8) * 4 + qt) * 4
O_ = lambda dt, qt: (dt * 4 + qt) * 4
QP = lambda qt, ds: 128 + 16 * qt + 4 * ds
KF = lambda g: 192 + 4 * g
VF = lambda g: 224 + 4 * g
XF = lambda st, qt: 128 + 16 * st + 4 * qt
WF = lambda f: 160 + 4 * f
sX, sW, sK, sV, sO, sTA, sWO, sWP = 4, 8, 12, 16, 20, 24, 32, 36
sFb, sHb = 28, 29
sPub, sX2, sFl = 30, 31, 52
sO2, sW2, sOut, sMk, sO2o, sW2o, sLb, sSp, sFa = 4, 8, 24, 32, 34, 35, 50, 51, 43
sWave, sWK, sWV, sW4k, sW8k, sCnt, sKV, sHead, sC, sOo, sTAstep, sTAo = 40, 41, 42, 43, 44, 45, 46, 47, 48, 49, 50, 51
sT = lambda k: 53 + k
sStamp = lambda k: 60 + 2 * k
KT = 8448
VBASE = 8 * KT
FLAG = 16 * KT
XSLOT = [32640, 131072]
WBASE, WST = 65408, 16416
WSLOT = lambda st: WBASE + (st % 4) * WST
PBUF = 32640 - 20480

def emit_list(e, items):
    for f in items:
        f() if callable(f) else e(f)

def interleave(e, mf, fill):
    for i, m in enumerate(mf):
        m() if callable(m) else e(m)
        emit_list(e, fill.get(i, []))

def spread(items, gaps):
    d = {}
    n = len(items)
    for i, it in enumerate(items):
        d.setdefault(gaps[i * len(gaps) // n], []).append(it)
    return d

def merge(*ds):
    out = {}
    for d in ds:
        for k, vv in d.items():
            out.setdefault(k, []).extend(vv)
    return out

def dump_stamps(e, wave_sgpr, tmp_s, vt, srd, ws_lo, off):
    e("s_waitcnt lgkmcnt(0)")
    e(f"s_add_u32 s{srd}, s{ws_lo}, {off}"); e(f"s_addc_u32 s{srd+1}, s{ws_lo+1}, 0")
    e(f"s_mov_b32 s{srd+2}, {1<<20}"); e(f"s_mov_b32 s{srd+3}, 0x20000")
    e(f"s_lshl_b32 s{tmp_s}, s2, 2"); e(f"s_add_u32 s{tmp_s}, s{tmp_s}, s{wave_sgpr}"); e(f"s_lshl_b32 s{tmp_s}, s{tmp_s}, 7")
    e(f"v_mov_b32 v{vt}, 0")
    for k in range(16):
        e(f"v_mov_b32 v{vt+2}, s{60+2*k}"); e(f"v_mov_b32 v{vt+3}, s{61+2*k}")
        e(f"buffer_store_dwordx2 {v(vt+2,2)}, v{vt}, {s(srd,4)}, s{tmp_s} offen offset:{8*k}")
        e("s_nop 1")

def code_prefetch(e, base, label_end, vt, i_sgpr, st, lane):
    e(f"s_getpc_b64 {s(st,2)}")
    e.label(base)
    e(f"v_and_b32 v{vt}, 15, v{lane}")
    e(f"v_lshlrev_b32 v{vt}, 7, v{vt}")
    e(f"s_lshl_b32 s{st+2}, s{i_sgpr}, 11")
    e(f"v_add_u32 v{vt}, s{st+2}, v{vt}")
    e(f"v_min_u32 v{vt}, {label_end}, v{vt}")
    e.vm(f"global_load_dword v{TD}, v{vt}, {s(st,2)}")

def pol(x):
    return (" " + x.replace("+", " ")) if x else ""

def gen_k1(o):
    e = Emit()
    e.count_stores = True
    nt, ost, pst = pol(o['kvp']), pol(o['ost']), pol(o['pst'])
    def stamp(k):
        if o['stamps'] and not ((o['qtrace'] or o['ptrace'] or o['otr']) and k != 0): e(f"s_memtime {s(sStamp(k), 2)}")
    L = LANE
    t0, t1, t2, t3 = T(0), T(1), T(2), T(3)
    J, I, BLK, B, H0, TMP = 96, 97, 98, 99, 100, 101
    e.raw(f".globl {K1}\n.p2align 8\n.type {K1},@function")
    e.label(K1)
    e("s_cmp_ge_u32 s2, 256")
    e("s_cbranch_scc1 K1_END")
    e("s_load_dwordx16 s[64:79], s[0:1], 0")
    e("s_load_dwordx4 s[80:83], s[0:1], 64")
    e("s_load_dwordx2 s[94:95], s[0:1], 96")
    e("s_load_dwordx2 s[92:93], s[0:1], 80")
    stamp(0)
    if o['stamps']: e(f"s_memrealtime {s(sStamp(14), 2)}")
    e(f"v_lshrrev_b32 v{t0}, 6, v0")
    e(f"v_and_b32 v{L}, 63, v0")
    e(f"v_readfirstlane_b32 s{sWave}, v{t0}")
    e(f"s_and_b32 s{J}, s2, 7")
    e(f"s_lshr_b32 s{I}, s2, 3")
    e(f"s_lshr_b32 s{BLK}, s{J}, 2")
    e(f"s_and_b32 s{J}, s{J}, 3")
    e(f"s_lshl_b32 s{H0}, s{J}, 3"); e(f"s_and_b32 s{TMP}, s{I}, 3"); e(f"s_lshl_b32 s{TMP}, s{TMP}, 1")
    e(f"s_add_u32 s{H0}, s{H0}, s{TMP}"); e(f"s_lshr_b32 s{B}, s{I}, 2")
    big = 0x40000000
    e(f"v_mov_b32 v{t3}, {big}")
    e(f"s_and_b32 s{TMP}, s{I}, 3"); e(f"s_lshl_b32 s{TMP}, s{TMP}, 6")
    e(f"v_add_u32 v{t0}, s{TMP}, v{L}"); e(f"v_mul_u32_u24 v{t0}, 1280, v{t0}")
    e(f"v_lshrrev_b32 v{t1}, 2, v{L}"); e(f"s_lshl_b32 s{TMP}, s{B}, 3"); e(f"v_add_u32 v{t1}, s{TMP}, v{t1}")
    e(f"v_lshlrev_b32 v{t1}, 13, v{t1}"); e(f"v_and_b32 v{t2}, 3, v{L}"); e(f"v_lshl_add_u32 v{t1}, v{t2}, 7, v{t1}")
    e(f"v_cmp_gt_u32 vcc, 32, v{L}"); e("s_nop 1"); e(f"v_cndmask_b32 v{t1}, v{t3}, v{t1}, vcc")
    e(f"s_cmp_eq_u32 s{sWave}, 0"); e("s_cselect_b64 vcc, -1, 0"); e(f"v_cndmask_b32 v{TA}, v{t1}, v{t0}, vcc")
    e(f"s_cmp_gt_u32 s{sWave}, 1"); e("s_cselect_b64 vcc, -1, 0"); e(f"v_cndmask_b32 v{TA}, v{TA}, v{t3}, vcc")
    e(f"s_movk_i32 s{sTAstep}, 128")
    e(f"s_cmp_eq_u32 s{sWave}, 0")
    e(f"s_cselect_b32 s{sTAstep}, s{sTAstep}, {64*8192}")
    e(f"s_mul_i32 s{sTAo}, s{sTAstep}, {o['tskip']}")
    e(f"s_mul_i32 s{sT(0)}, s{B}, 327680")
    e(f"s_lshl_b32 s{sT(1)}, s{H0}, 8")
    e(f"s_mov_b32 s{sX+2}, 327680"); e(f"s_mov_b32 s{sX+3}, 0x20000")
    e(f"s_sub_u32 s{sW+2}, {640*8192}, s{sT(1)}"); e(f"s_mov_b32 s{sW+3}, 0x20000")
    e(f"s_mov_b32 s{sTA+3}, 0x20000")
    e("s_waitcnt lgkmcnt(0)")
    e(f"s_cmp_eq_u32 s{BLK}, 0")
    e("s_cselect_b32 s64, s64, s74"); e("s_cselect_b32 s65, s65, s75")
    e("s_cselect_b32 s70, s70, s80"); e("s_cselect_b32 s71, s71, s81")
    e("s_cselect_b32 s66, s66, s76"); e("s_cselect_b32 s67, s67, s77")
    e("s_cselect_b32 s68, s68, s78"); e("s_cselect_b32 s69, s69, s79")
    e("s_cselect_b32 s72, s72, s82"); e("s_cselect_b32 s73, s73, s83")
    e(f"s_add_u32 s{sX}, s64, s{sT(0)}"); e(f"s_addc_u32 s{sX+1}, s65, 0")
    e(f"s_add_u32 s{sW}, s70, s{sT(1)}"); e(f"s_addc_u32 s{sW+1}, s71, 0")
    e(f"s_cmp_eq_u32 s{sWave}, 0")
    for k in range(3): e(f"s_cselect_b32 s{sTA+k}, s{sX+k}, s{sW+k}")

    def x_dma(D, half):
        f = [f"s_add_u32 m0, s{sW8k}, {XSLOT[D%2]+half*4096}", f"s_mov_b32 s{sT(0)}, {D*128}"]
        for k in range(4):
            f.append(lambda k=k: e.vm(f"buffer_load_dwordx4 v{XD(half*4+k)}, {s(sX,4)}, s{sT(0)} offen offset:{k*1024}{' nt' if D < o['d0nt'] else ''} lds", ('x', D)))
        return f
    def w_dma(st):
        f = [f"s_add_u32 m0, s{sW4k}, {WSLOT(st)}", f"s_mov_b32 s{sT(1)}, {st*32*8192}"]
        for k in range(4):
            f.append(lambda k=k: e.vm(f"buffer_load_dwordx4 v{WD(k)}, {s(sW,4)}, s{sT(1)} offen offset:{k*1024}{' nt' if st < 2 * o['d0nt'] else ''} lds", ('w', st)))
        return f
    tac = [0]
    def touch_a():
        tac[0] += 1
        pl = " nt" if tac[0] <= o['ta_nt'] else ""
        return [lambda: e.vm(f"buffer_load_dword v{TD}, v{TA}, {s(sTA,4)}, s{sTAo} offen{pl}"), f"s_add_u32 s{sTAo}, s{sTAo}, s{sTAstep}"]
    pt = lambda k: e(f"s_memtime {s(sStamp(k), 2)}") if o['ptrace'] else None
    for _ in range(o['ta0']): emit_list(e, touch_a())
    if o['codepf']:
        code_prefetch(e, "K1_PFBASE", "K1_END-K1_PFBASE", t0, I, 56, L)
    pt(1)
    e(f"s_mul_i32 s{sW4k}, s{sWave}, {4096+o['wsh']}")
    e(f"s_lshl_b32 s{sW8k}, s{sWave}, 13")
    e(f"v_lshrrev_b32 v{t0}, 3, v{L}")
    e(f"s_lshl_b32 s{TMP}, s{sWave}, 6")
    e(f"v_add_u32 v{t0}, s{TMP}, v{t0}")
    e(f"v_mul_u32_u24 v{t0}, 1280, v{t0}")
    e(f"v_and_b32 v{t1}, 7, v{L}")
    e(f"v_lshrrev_b32 v{t2}, 4, v{L}")
    e(f"v_xor_b32 v{t1}, v{t1}, v{t2}")
    e(f"v_lshl_add_u32 v{XD(0)}, v{t1}, 4, v{t0}")
    e(f"v_xor_b32 v{t1}, 64, v{XD(0)}")
    for k in range(1, 8):
        e(f"v_add_u32 v{XD(k)}, {k*8*1280-(k%4)*1024}, v{XD(0) if k%2==0 else t1}")
    e(f"v_lshrrev_b32 v{t0}, 5, v{L}")
    e(f"v_and_b32 v{t1}, 31, v{L}")
    e(f"v_lshlrev_b32 v{t2}, 2, v{t0}")
    e(f"v_xor_b32 v{t1}, v{t1}, v{t2}")
    e(f"v_lshlrev_b32 v{t1}, 4, v{t1}")
    e(f"s_lshl_b32 s{TMP}, s{sWave}, 3")
    e(f"v_add_u32 v{t0}, s{TMP}, v{t0}")
    e(f"v_lshl_add_u32 v{WD(0)}, v{t0}, 13, v{t1}")
    e(f"v_xor_b32 v{t1}, 128, v{WD(0)}")
    for k in range(1, 4):
        e(f"v_add_u32 v{WD(k)}, {k*2*8192-k*1024}, v{WD(0) if k%2==0 else t1}")
    if o['early']:
        emit_list(e, x_dma(0, 0) + x_dma(0, 1) + w_dma(0) + w_dma(1))
        for _ in range(o['ta1']): emit_list(e, touch_a())
    e(f"s_lshl_b32 s{TMP}, s{B}, 5"); e(f"s_add_u32 s{TMP}, s{TMP}, s{H0}"); e(f"s_lshl_b32 s{TMP}, s{TMP}, 18")
    e(f"s_add_u32 s{sK}, s66, s{TMP}"); e(f"s_addc_u32 s{sK+1}, s67, 0")
    e(f"s_mov_b32 s{sK+2}, 524288"); e(f"s_mov_b32 s{sK+3}, 0x20000")
    e(f"s_add_u32 s{sV}, s68, s{TMP}"); e(f"s_addc_u32 s{sV+1}, s69, 0")
    e(f"s_mov_b32 s{sV+2}, 524288"); e(f"s_mov_b32 s{sV+3}, 0x20000")
    e(f"s_lshl_b32 s{TMP}, s{BLK}, 3"); e(f"s_add_u32 s{TMP}, s{TMP}, s{B}"); e(f"s_lshl_b32 s{TMP}, s{TMP}, 21")
    e(f"s_add_u32 s{sO}, s94, s{TMP}"); e(f"s_addc_u32 s{sO+1}, s95, 0")
    e(f"s_mov_b32 s{sO+2}, {2<<20}"); e(f"s_mov_b32 s{sO+3}, 0x20000")
    e(f"s_lshr_b32 s{sOo}, s{H0}, 4"); e(f"s_lshl_b32 s{sOo}, s{sOo}, 19")
    e(f"s_and_b32 s{TMP}, s{H0}, 15"); e(f"s_lshl_b32 s{TMP}, s{TMP}, 14"); e(f"s_add_u32 s{sOo}, s{sOo}, s{TMP}")
    e(f"s_lshl_b32 s{TMP}, s{J}, 5"); e(f"s_add_u32 s{TMP}, s{TMP}, s{I}")
    e(f"s_mul_i32 s{sT(2)}, s{TMP}, 40960")
    e(f"s_add_u32 s{sWO}, s72, s{sT(2)}"); e(f"s_addc_u32 s{sWO+1}, s73, 0")
    e(f"s_mov_b32 s{sWO+2}, 40960"); e(f"s_mov_b32 s{sWO+3}, 0x20000")
    e(f"s_and_b32 s{sT(2)}, s{TMP}, 0x43"); e(f"s_bfe_u32 s{sT(3)}, s{TMP}, 0x10002"); e(f"s_lshl_b32 s{sT(3)}, s{sT(3)}, 5")
    e(f"s_add_u32 s{sT(2)}, s{sT(2)}, s{sT(3)}"); e(f"s_bfe_u32 s{sT(3)}, s{TMP}, 0x30003"); e(f"s_lshl_b32 s{sT(3)}, s{sT(3)}, 2")
    e(f"s_add_u32 s{TMP}, s{sT(2)}, s{sT(3)}")
    e(f"s_mul_i32 s{TMP}, s{TMP}, 10240")
    e(f"s_mul_i32 s{sT(2)}, s{BLK}, 5242880")
    e(f"s_add_u32 s{sT(2)}, s{sT(2)}, {WP_OFF}")
    e(f"s_add_u32 s{sT(2)}, s{sT(2)}, s{TMP}")
    e(f"s_add_u32 s{sWP}, s94, s{sT(2)}"); e(f"s_addc_u32 s{sWP+1}, s95, 0")
    e(f"s_sub_u32 s{sWP+2}, 5242880, s{TMP}"); e(f"s_mov_b32 s{sWP+3}, 0x20000")
    e(f"s_lshl_b32 s{TMP}, s{BLK}, 9"); e(f"s_add_u32 s{TMP}, s{TMP}, {FL_OFF}")
    e(f"v_lshlrev_b32 v{FO}, 3, v{L}"); e(f"v_add_u32 v{FO}, s{TMP}, v{FO}")
    e.vm(f"global_load_dwordx2 {v(SN,2)}, v{FO}, s[94:95] sc1", ('sn',))
    e(f"s_lshl_b32 s{TMP}, s{BLK}, 3"); e(f"s_add_u32 s{TMP}, s{TMP}, s{B}"); e(f"s_lshl_b32 s{TMP}, s{TMP}, 2")
    e(f"s_xor_b32 s{sT(2)}, s{J}, 2"); e(f"s_add_u32 s{TMP}, s{TMP}, s{sT(2)}"); e(f"s_lshl_b32 s{TMP}, s{TMP}, 2")
    e(f"s_and_b32 s{sT(2)}, s{I}, 3"); e(f"s_add_u32 s{TMP}, s{TMP}, s{sT(2)}"); e(f"s_lshl_b32 s{TMP}, s{TMP}, 2")
    e(f"s_add_u32 s{TMP}, s{TMP}, s{sWave}"); e(f"s_mul_i32 s{TMP}, s{TMP}, 10240"); e(f"s_add_u32 s{TMP}, s{TMP}, {EX_OFF+4096}")
    e(f"v_lshlrev_b32 v{CLA}, 4, v{L}"); e(f"v_add_u32 v{CLA}, s{TMP}, v{CLA}")
    e(f"s_mul_i32 s{sWK}, s{sWave}, {2*1056}")
    e(f"s_add_u32 s{sWV}, s{sWK}, {VBASE}")
    e(f"s_mov_b32 s{sC}, 0x3e0293ee")
    e(f"s_mov_b32 s{sFb}, 0"); e(f"s_mov_b32 s{sHb}, 0"); e(f"s_mov_b32 s{sHead}, 0"); e(f"s_mov_b32 s{sPub}, 99"); e(f"s_mov_b32 s{sX2}, 99")
    e(f"v_and_b32 v{t0}, 15, v{L}")
    e(f"v_lshlrev_b32 v{t0}, 7, v{t0}")
    e(f"v_add_u32 v{t0}, s{sW8k}, v{t0}")
    e(f"v_lshrrev_b32 v{t1}, 4, v{L}")
    e(f"v_bfe_u32 v{t2}, v{L}, 1, 3")
    e(f"v_xor_b32 v{t1}, v{t1}, v{t2}")
    e(f"v_lshl_add_u32 v{t0}, v{t1}, 4, v{t0}")
    for kk in range(2):
        e(f"v_xor_b32 v{t1}, {kk<<6}, v{t0}")
        for sl in range(2): e(f"v_add_u32 v{XA(sl,kk)}, {XSLOT[sl]}, v{t1}")
    e(f"v_bfe_u32 v{t0}, v{L}, 2, 2")
    e(f"v_lshrrev_b32 v{t1}, 4, v{L}")
    e(f"v_mul_u32_u24 v{t1}, {4096+o['wsh']}, v{t1}")
    e(f"v_lshl_add_u32 v{t1}, v{t0}, 9, v{t1}")
    e(f"v_and_b32 v{t2}, 3, v{L}")
    e(f"v_lshl_add_u32 v{t1}, v{t2}, 4, v{t1}")
    e(f"v_add_u32 v{t1}, {WBASE}, v{t1}")
    for k in range(4):
        e(f"v_xor_b32 v{t2}, {k}, v{t0}")
        e(f"v_lshl_add_u32 v{WA(k)}, v{t2}, 6, v{t1}")
    e(f"v_lshlrev_b32 v{t0}, 4, v{L}"); e(f"s_lshl_b32 s{sT(2)}, s{sWave}, 10")
    e(f"v_add_u32 v{DP(0)}, s{sT(2)}, v{t0}"); e(f"v_add_u32 v{DP(1)}, 4096, v{DP(0)}")
    e(f"v_add_u32 v{KD(0)}, 24576, v{DP(0)}"); e(f"v_add_u32 v{KD(1)}, {24576-1056}, v{DP(1)}")
    e(f"v_add_u32 v{VD(0)}, 8192, v{DP(0)}"); e(f"v_add_u32 v{VD(1)}, {8192-1056}, v{DP(1)}")
    e(f"s_lshr_b32 s{sT(2)}, s{sWave}, 1"); e(f"s_lshl_b32 s{sT(2)}, s{sT(2)}, 20")
    e(f"s_and_b32 s{sT(3)}, s{sWave}, 1"); e(f"s_lshl_b32 s{sT(3)}, s{sT(3)}, 13"); e(f"s_add_u32 s{sT(2)}, s{sT(2)}, s{sT(3)}")
    e(f"v_add_u32 v{OD}, s{sT(2)}, v{t0}")
    e(f"s_lshr_b32 s{sT(2)}, s{sWave}, 1"); e(f"s_mul_i32 s{sT(2)}, s{sT(2)}, 1310720")
    e(f"s_and_b32 s{sT(3)}, s{sWave}, 1"); e(f"s_mul_i32 s{sT(3)}, s{sT(3)}, 5120"); e(f"s_add_u32 s{sT(2)}, s{sT(2)}, s{sT(3)}")
    e(f"v_add_u32 v{PO}, s{sT(2)}, v{t0}")
    e(f"v_and_b32 v{t0}, 3, v{L}"); e(f"v_bfe_u32 v{t1}, v{L}, 2, 1"); e(f"v_lshl_add_u32 v{t0}, v{t0}, 1, v{t1}")
    e(f"v_mul_u32_u24 v{t0}, 1056, v{t0}")
    e(f"v_bfe_u32 v{t1}, v{L}, 3, 1"); e(f"v_lshl_add_u32 v{t0}, v{t1}, 8, v{t0}")
    e(f"v_lshrrev_b32 v{t1}, 4, v{L}"); e(f"v_lshl_add_u32 v{KA}, v{t1}, 4, v{t0}")
    e(f"v_bfe_u32 v{t0}, v{L}, 2, 2"); e(f"v_bfe_u32 v{t1}, v{L}, 4, 1"); e(f"v_lshl_add_u32 v{t0}, v{t0}, 1, v{t1}")
    e(f"v_mul_u32_u24 v{t0}, 1056, v{t0}")
    e(f"v_lshrrev_b32 v{t1}, 5, v{L}"); e(f"v_lshl_add_u32 v{t0}, v{t1}, 8, v{t0}")
    e(f"v_and_b32 v{t1}, 3, v{L}"); e(f"v_lshl_add_u32 v{t0}, v{t1}, 3, v{t0}")
    e(f"v_add_u32 v{VA}, {VBASE}, v{t0}")
    e(f"s_mul_i32 s{sT(2)}, s{sWave}, {8*1280}")
    for p in range(5):
        e(f"v_add_u32 v{t0}, {p*64}, v{L}"); e(f"v_mul_u32_u24 v{t1}, 1639, v{t0}"); e(f"v_lshrrev_b32 v{t1}, 16, v{t1}")
        e(f"v_mul_u32_u24 v{t2}, {1280-640}, v{t1}"); e(f"v_lshl_add_u32 v{t2}, v{t0}, 4, v{t2}")
        e(f"v_add_u32 v{t2}, s{sT(2)}, v{t2}")
        e(f"v_subrev_u32 v{PD(p)}, {p*1024 if p < 4 else 0}, v{t2}")
    e(f"v_lshrrev_b32 v{t0}, 2, v{L}")
    e(f"v_mul_u32_u24 v{t0}, 640, v{t0}"); e(f"v_and_b32 v{t1}, 3, v{L}"); e(f"v_lshl_add_u32 v{t0}, v{t1}, 3, v{t0}")
    e(f"s_mul_i32 s{sT(2)}, s{sWave}, 160"); e(f"v_add_u32 v{PA}, s{sT(2)}, v{t0}")
    for i in range(4): e(f"v_mov_b32 v{ONES+i}, 0x3f803f80")
    for qt in range(4): e(f"v_mov_b32 v{MT(qt)}, 0xff800000")
    e(f"s_lshl_b32 s{sT(2)}, s{sWave}, 2"); e(f"s_add_u32 s{sT(2)}, s{sT(2)}, {FLAG}"); e(f"v_mov_b32 v{FA}, s{sT(2)}")

    def pack_dma(ch):
        f = [f"s_mul_i32 s{sT(4)}, s{sWave}, 5120", f"s_add_u32 m0, s{sT(4)}, {PBUF}", f"s_mov_b32 s{sT(5)}, {ch*640}"]
        for p in range(4):
            f.append(lambda p=p: e.vm(f"buffer_load_dwordx4 v{PD(p)}, {s(sWO,4)}, s{sT(5)} offen offset:{p*1024} lds", ('p', ch)))
        f += [f"s_add_u32 m0, s{sT(4)}, {PBUF+4096}", "s_nop 0"]
        f.append(lambda: e.vm(f"buffer_load_dwordx4 v{PD(4)}, {s(sWO,4)}, s{sT(5)} offen lds", ('p', ch)))
        return f
    def pack_read(ch):
        return [lambda t=t, sec=sec: e.lds(f"ds_read_b64_tr_b16 {v(PF(t,ch)+2*sec,2)}, v{PA} offset:{PBUF+t*32+sec*10240}", ('pf', t)) for t in range(5) for sec in range(2)]
    def pack_store(ch):
        f = [f"s_mov_b32 s{sT(5)}, {ch*4*655360}", f"s_mov_b32 s{sT(4)}, {ch*4*655360+4096}", lambda: e.need([('pf', 4)])]
        for t in range(4):
            f.append(lambda t=t: e.vm(f"buffer_store_dwordx4 {v(PF(t,ch),4)}, v{PO}, {s(sWP,4)}, s{sT(5)} offen offset:{t*1024}{pst}"))
        f.append(lambda: e.vm(f"buffer_store_dwordx4 {v(PF(4,ch),4)}, v{PO}, {s(sWP,4)}, s{sT(4)} offen{pst}"))
        return f
    def pre(which, tile):
        base, srd = ((sWK, sK), (sWV, sV))[which == 'V']
        sl = tile * KT
        return [f"s_add_u32 m0, s{base}, {sl}", f"s_add_u32 s{sT(6)}, s{sHb}, {tile*8192}",
                lambda: e.vm(f"buffer_load_dwordx4 v{DP(0)}, {s(srd,4)}, s{sT(6)} offen{nt} lds", (which, tile)),
                f"s_add_u32 m0, s{base}, {sl+1056}", "s_nop 0",
                lambda: e.vm(f"buffer_load_dwordx4 v{DP(1)}, {s(srd,4)}, s{sT(6)} offen{nt} lds", (which, tile))]
    PRE_ORDER = [('K', 0), ('K', 1), ('K', 2), ('K', 3), ('K', 4), ('V', 0), ('K', 5), ('V', 1), ('K', 6), ('V', 2), ('K', 7), ('V', 3), ('V', 4), ('V', 5)]

    def w_read(st, f):
        hd, ds, t = f // 8, (f % 8) // 2, f % 2
        return [lambda sec=sec: e.lds(f"ds_read_b64_tr_b16 {a(WF(f)+2*sec,2)}, v{WA(ds)} offset:{(st%4)*WST+sec*2048+hd*256+t*8}", ('w', f)) for sec in range(2)]
    def x_read(st):
        return [lambda qt=qt: e.lds(f"ds_read_b128 {a(XF(st%2,qt),4)}, v{XA((st//2)%2,st%2)} offset:{qt*2048}", ('x', st % 2, qt)) for qt in range(4)]
    def q_reads(n):
        st = n // 2
        if n % 2 == 0: return [r for f in range(8, 16) for r in w_read(st, f)]
        if st == 19: return []
        r0 = [r for f in range(0, 8) for r in w_read(st + 1, f)]
        return x_read(st + 1) + r0
    def q_mfmas(n):
        st = n // 2
        m = []
        for f in range(8 * (n % 2), 8 * (n % 2) + 8):
            for qt in range(4):
                def g(f=f, qt=qt):
                    if qt == 0 and f % 2 == 0:
                        e.need([('w', f), ('w', f + 1)] + ([('x', st % 2, 3)] if f == 0 else []))
                    acc = (v if f < 8 else a)(ACC(f, qt), 4)
                    e(f"{MF} {acc}, {a(WF(f),4)}, {a(XF(st%2,qt),4)}, {acc if st else 0}")
                m.append(g)
        return m
    pt(2)
    if not o['early']:
        emit_list(e, x_dma(0, 0) + x_dma(0, 1) + w_dma(0) + w_dma(1))
        for _ in range(o['ta1']): emit_list(e, touch_a())
    pt(3)
    stamp(1)
    n_ = e.vm_count([('x', 0), ('w', 0)])
    e(f"s_waitcnt vmcnt({n_})")
    pt(4)
    e("s_barrier")
    pt(5)
    emit_list(e, x_read(0) + [r for f in range(8) for r in w_read(0, f)])
    extra = {n: [] for n in range(40)}
    sc = o['sched']
    def put(n, lo, hi, items):
        if not items: return
        usem0 = lambda its: any(isinstance(x, str) and 'm0' in x for x in its)
        if usem0(items):
            for l2, h2, it2 in extra[n]:
                assert not usem0(it2) or hi <= l2 or h2 <= lo, (n, lo, hi, l2, h2)
        extra[n].append((lo, hi, items))
    def putk(kind, D, items):
        dn, lo, hi = sc[kind]
        put(4 * D + dn, lo, hi, items)
    put(0, 2, 16, x_dma(1, 0)); put(0, 16, 32, x_dma(1, 1))
    put(1, 2, 16, w_dma(2)); put(2, 2, 16, w_dma(3)); put(3, 16, 32, w_dma(4))
    put(4, 2, 16, x_dma(2, 0)); put(4, 16, 32, x_dma(2, 1)); put(5, 2, 16, w_dma(5))
    ta_left = 10 - o['ta0'] - o['ta1'] - o['tskip']
    pkd = {}
    if o['pack']:
        for ch in range(2):
            pd = pack_dma(ch)
            parts = [pd[:5], [pd[0], pd[1], pd[2]] + pd[5:7], [pd[0], pd[2]] + pd[7:]]
            for w_, part in zip(o['pk'][ch], parts): pkd.setdefault(w_, []).extend(part)
    for D in range(10):
        if D >= 2 and D + 1 <= 9: putk('xa', D, x_dma(D + 1, 0)); putk('xb', D, x_dma(D + 1, 1))
        if D >= 2 and 2 * D + 3 <= 19: putk('wa', D, w_dma(2 * D + 3))
        if D == 1: put(6, 16, 32, w_dma(6))
        elif D >= 2 and 2 * D + 4 <= 19: putk('wb', D, w_dma(2 * D + 4))
        bu = []
        if D < ta_left: bu += touch_a()
        bu += pkd.get(D, [])
        if D == 0: put(2, 16, 32, bu)
        elif D == 1: put(5, 16, 32, bu)
        else: putk('bu', D, bu)
    bneed = {st: [('w', st + 1)] + ([('x', (st + 1) // 2)] if st % 2 == 1 else []) for st in range(19)}
    bneed[19] = []
    late = []
    if o['pack']:
        for ch in range(2):
            st = 2 * o['pk'][ch][2] + 2
            bneed[st].append(('p', ch)); put(2 * st + 1, 8, 32, pack_read(ch))
            if o['pkl']:
                ps = pack_store(ch); assert o['pkl'][ch][0] >= 2 * st + 3
                late.append((o['pkl'][ch][0], ps[:5])); late.append((o['pkl'][ch][1], ps[5:]))
            else: put(2 * st + 3, 0, 16, pack_store(ch))
            wn = lambda D: {0: 2, 1: 5}.get(D, 4 * D + sc['bu'][0])
            if ch == 0: assert wn(o['pk'][1][0]) >= 2 * st + 4, "pack WAR"
            else:
                for n_, tl in o['pre']:
                    if any(x in ('K1', 'K2', 'K3') for x in tl): assert n_ >= 2 * st + 3, "pack vs K prefill"

    for n_, tl in o['pre']:
        items = []
        for x in tl: items += pre(x[0], int(x[1:]))
        put(n_, 2, 32, items)
    for n_, it in late: put(n_, 1, 32, it)
    bneed[17].append(('sn',))
    H0_, T2, T3 = H0, sT(2), sT(3)
    su = []
    su += [f"s_lshl_b32 s{TMP}, s{BLK}, 3", f"s_add_u32 s{TMP}, s{TMP}, s{B}", f"s_lshl_b32 s{TMP}, s{TMP}, 1", f"s_and_b32 s{T2}, s{J}, 1", f"s_add_u32 s{TMP}, s{TMP}, s{T2}",
           f"s_lshl_b32 s{TMP}, s{TMP}, 20", f"s_lshr_b32 s{H0_}, s{J}, 1", f"s_lshl_b32 s{T3}, s{H0_}, 19", f"s_add_u32 s{TMP}, s{TMP}, s{T3}",
           f"s_add_u32 s{sO2}, s94, s{TMP}", f"s_addc_u32 s{sO2+1}, s95, 0", f"s_mov_b32 s{sO2+2}, {1<<19}", f"s_mov_b32 s{sO2+3}, 0x20000"]
    su += [f"s_and_b32 s{T3}, s{I}, 3", f"s_lshl_b32 s{TMP}, s{BLK}, 2", f"s_add_u32 s{TMP}, s{TMP}, s{T3}", f"s_lshl_b32 s{TMP}, s{TMP}, 1", f"s_add_u32 s{TMP}, s{TMP}, s{H0_}",
           f"s_mul_i32 s{TMP}, s{TMP}, 655360", f"s_add_u32 s{TMP}, s{TMP}, {WP_OFF}",
           f"s_add_u32 s{sW2}, s94, s{TMP}", f"s_addc_u32 s{sW2+1}, s95, 0", f"s_mov_b32 s{sW2+2}, 655360", f"s_mov_b32 s{sW2+3}, 0x20000"]
    su += [f"s_lshl_b32 s{TMP}, s{B}, 1", f"s_add_u32 s{TMP}, s{TMP}, s{T2}", f"s_mul_i32 s{TMP}, s{TMP}, {128*2560}", f"s_mul_i32 s{T2}, s{BLK}, 1280", f"s_add_u32 s{TMP}, s{TMP}, s{T2}",
           f"s_lshl_b32 s{T2}, s{T3}, 1", f"s_add_u32 s{T2}, s{T2}, s{H0_}", f"s_mul_i32 s{T2}, s{T2}, 160", f"s_add_u32 s{TMP}, s{TMP}, s{T2}",
           f"s_add_u32 s{sOut}, s92, s{TMP}", f"s_addc_u32 s{sOut+1}, s93, 0", f"s_sub_u32 s{sOut+2}, {2048*2560}, s{TMP}", f"s_mov_b32 s{sOut+3}, 0x20000"]
    su += [f"s_lshl_b32 s{TMP}, s{B}, 3", f"s_mov_b64 {s(sMk,2)}, 0xff", f"s_lshl_b64 {s(sMk,2)}, {s(sMk,2)}, s{TMP}",
           f"s_lshl_b32 s{TMP}, s{B}, 2", f"s_add_u32 s{TMP}, s{TMP}, s{J}", f"s_lshl_b32 s{TMP}, s{TMP}, 2", f"s_add_u32 s{TMP}, s{TMP}, s{T3}",
           f"v_add_u32 v{SN}, 1, v{SN}", f"v_add_u32 v{SN+1}, 1, v{SN+1}", f"s_lshr_b32 s{T2}, s{TMP}, 1",
           f"s_lshl_b32 s{sFa}, s{BLK}, 7", f"s_add_u32 s{sFa}, s{sFa}, s{TMP}", f"s_lshl_b32 s{sFa}, s{sFa}, 2", f"s_add_u32 s{sFa}, s{sFa}, {FL_OFF}",
           f"v_readlane_b32 s{sFl}, v{SN}, s{T2}", f"v_readlane_b32 s{T2}, v{SN+1}, s{T2}", f"s_bitcmp1_b32 s{TMP}, 0", f"s_cselect_b32 s{sFl}, s{T2}, s{sFl}"]
    su += [f"s_mul_i32 s{sLb}, s{sWave}, 5120", f"v_lshlrev_b32 v{t0}, 4, v{L}", f"s_lshl_b32 s{TMP}, s{sWave}, 12", f"v_add_u32 v{OD2}, s{TMP}, v{t0}",
           f"v_add_u32 v{WD2}, s{sLb}, v{t0}", f"v_add_u32 v{WD2+1}, 4096, v{WD2}", f"s_mul_i32 s{TMP}, s{H0_}, 5120", f"v_add_u32 v{RK}, s{TMP}, v{t0}",
           f"s_sub_u32 s{TMP}, 5120, s{TMP}", f"v_add_u32 v{RS}, s{TMP}, v{t0}"]
    su += [f"v_add_u32 v{r+k}, {61440*k}, v{r}" for r in (RK, RS) for k in (1, 2)]
    su += [f"v_and_b32 v{t0}, 15, v{L}", f"s_lshl_b32 s{TMP}, s{sWave}, 5", f"v_add_u32 v{t0}, s{TMP}, v{t0}", f"v_mul_u32_u24 v{t0}, 2560, v{t0}",
           f"v_lshrrev_b32 v{t1}, 4, v{L}", f"v_lshl_add_u32 v{SD}, v{t1}, 3, v{t0}", f"v_mov_b32 v{EXS}, v{CLA}", f"v_add_u32 v{EXS+1}, 8192, v{CLA}"]
    su2 = []
    for x in su:
        if x.startswith(("s_addc", "s_cselect")):
            pv_ = su2.pop(); su2.append(lambda pv_=pv_, x=x: (e(pv_), e(x)))
        else: su2.append(x)
    su = su2
    assert ta_left <= 9
    h = len(su) // 3
    put(37, 0, 32, su[:h]); put(38, 0, 32, su[h:2*h]); put(39, 0, 32, su[2*h:])
    for n in range(40):
        mf = q_mfmas(n)
        if o['qtrace'] and n % 2 == 0 and o['qt0'] + 1 <= n // 2 <= o['qt0'] + 13: e(f"s_memtime {s(sStamp(n//2-o['qt0']), 2)}")
        fill = {}
        def bar(st=n // 2):
            vmc = e.vm_count(bneed[st])
            e(f"s_waitcnt {'vmcnt(%d) ' % vmc if vmc is not None else ''}lgkmcnt(0)"); e.lgkm0()
            e("s_barrier")
        rd = q_reads(n)
        if rd: fill = merge(fill, spread(rd, list(range(0, 24 if n % 2 == 0 else 28))))
        for lo, hi, items in extra[n]: fill = merge(fill, spread(items, list(range(lo, min(hi, 31) if n % 2 == 0 else hi))))
        if n % 2 == 0: fill.setdefault(31, []).append(bar)
        interleave(e, mf, fill)
    stamp(2)
    emit_list(e, pre('V', 4))
    e("s_nop 3")
    for ds in range(4):
        for qt in range(4):
            for t in range(2):
                b = ACC(2 * ds + t, qt)
                for i in range(0, 4, 2): e(f"v_pk_mul_f32 {v(b+i,2)}, {v(b+i,2)}, {s(sC,2)} op_sel_hi:[1,0]")
            for t in range(2):
                b = ACC(2 * ds + t, qt)
                for i in range(2): e(f"v_cvt_pk_bf16_f32 v{QW(qt,ds)+2*t+i}, v{b+2*i}, v{b+2*i+1}")
    emit_list(e, pre('V', 5))
    for ds in range(4):
        for qp in range(2):
            for q2 in range(2):
                for t in range(2):
                    for i in range(4): e(f"v_accvgpr_read_b32 v{8*q2+4*t+i}, a{ACC(2*ds+t, 2*qp+q2)+i}")
            for i in range(0, 16, 2): e(f"v_pk_mul_f32 {v(i,2)}, {v(i,2)}, {s(sC,2)} op_sel_hi:[1,0]")
            for jj in range(8): e(f"v_cvt_pk_bf16_f32 v{16+jj}, v{2*jj}, v{2*jj+1}")
            for jj in range(8): e(f"v_accvgpr_write_b32 a{QP(2*qp+jj//4, ds)+jj%4}, v{16+jj}")
    e(f"s_mov_b32 s{sKV}, {5*8192}")
    n_ = e.vm_count([('K', 0), ('K', 1)])
    e(f"s_waitcnt vmcnt({n_})")
    e("s_barrier")
    stamp(3)

    def k_read(g, tile):
        if o['no_lds']: return lambda: e.tag.__setitem__(('k', g), 0)
        return lambda: e.lds(f"ds_read_b128 {a(KF(g),4)}, v{KA} offset:{(tile%8)*KT+(g%2)*512+(g//2)*64}", ('k', g))
    def v_read(g, tile):
        if o['no_lds']: return [lambda: e.tag.__setitem__(('v', g), 0)] * 2
        return [lambda sec=sec: e.lds(f"ds_read_b64_tr_b16 {a(VF(g)+2*sec,2)}, v{VA} offset:{(tile%8)*KT+sec*512+g*32}", ('v', g)) for sec in range(2)]
    def qk(g, qt, p, c0=None):
        d = v(S_(p, g % 2, qt), 4)
        c = d if g >= 2 else (c0 if c0 is not None else v(CI(qt), 4))
        return f"{MF} {d}, {a(KF(g),4)}, {v(QW(qt,g//2),4)}, {c}"
    def pv(g, qt, p, first=False):
        d = a(O_(g, qt), 4)
        return f"{MF} {d}, {a(VF(g),4)}, {v(P_(p,qt),4)}, {'0' if first else d}"
    def lsum(qt, p, first=False):
        d = v(LS(qt), 4)
        return f"{MF} {d}, {v(ONES,4)}, {v(P_(p,qt),4)}, {'0' if first else d}"
    sreg = lambda p, k: S_(p, (k // 4) % 2, k // 8) + k % 4
    sm_exp = lambda p, k: f"v_exp_f32 v{sreg(p,k)}, v{sreg(p,k)}"
    sm_cvt = lambda p, k: f"v_cvt_pk_bf16_f32 v{P_(p,0)+k//2}, v{sreg(p,k)}, v{sreg(p,k)+1}"
    def kdma(i):
        return [f"s_add_u32 m0, s{sWK}, {(i%8)*KT}",
                f"buffer_load_dwordx4 v{KD(0)}, {s(sK,4)}, s{sKV} offen{nt} lds",
                f"buffer_load_dwordx4 v{KD(1)}, {s(sK,4)}, s{sKV} offen offset:1056{nt} lds"]
    def vdma(i):
        return [f"s_add_u32 m0, s{sWV}, {((i+6)%8)*KT}",
                f"buffer_load_dwordx4 v{VD(0)}, {s(sV,4)}, s{sKV} offen{nt} lds",
                f"buffer_load_dwordx4 v{VD(1)}, {s(sV,4)}, s{sKV} offen offset:1056{nt} lds",
                f"s_add_u32 s{sKV}, s{sKV}, 8192"]

    def cost(x):
        if x is None: return 0
        if isinstance(x, tuple): return x[1]
        if isinstance(x, str) and x.startswith("v_exp"): return 8
        return 4
    def fill_gap(gp, q, pos, cap=8):
        c = sum(cost(x) for x in gp)
        if c == 0: cap = 12
        while q and q[0][0] <= pos and c + q[0][2] <= cap and (q[0][2] < 8 or tv.get(pos, 0) < o['tvm']):
            _, it, cc = q.pop(0); gp.append(it); c += cc
            if cc == 8: tv[pos] = tv.get(pos, 0) + 1
    tv = {}
    def iteration(i, do_qk=True, do_pv=True, first_pv=False, carry=True, rd_lo=(1, 1), rd_hi=(1, 1), early_dma=True, tail=(), xq=None, vneed=None, poll=False):
        p = i % 2
        def tags(g):
            return ([('k', g), ('k', g + 1)] if do_qk else []) + ([('v', g), ('v', g + 1)] if do_pv else [])
        kd = kdma(i) if not o['no_dma'] and xq is None else [None] * 3
        vd = vdma(i - 1) if (early_dma and not o['no_dma'] and xq is None) else [None] * 4
        val = not o['no_valu']
        for g in range(8):
            mfs = []
            if do_qk: mfs += [qk(g, qt, 1 - p) for qt in range(4)]
            if do_pv: mfs += [pv(g, qt, 1 - p, first_pv) for qt in range(4)]
            fr = (g + 4) % 8
            lo = g < 4
            kr = k_read(fr, i + 1 if lo else i + 2) if (rd_lo if lo else rd_hi)[0] else None
            vr = v_read(fr, i - 1 if lo else i) if (rd_lo if lo else rd_hi)[1] else [None, None]
            ex = [sm_exp(p, 4 * g + j) if val else None for j in range(4)]
            c_prev = (sm_cvt(p, 4 * g - 2) if g else (sm_cvt(1 - p, 30) if carry else None)) if val else None
            c_own = sm_cvt(p, 4 * g) if val else None
            sal = {0: vd[0], 3: vd[3], 4: kd[0]}.get(g)
            dm = {0: vd[1], 2: vd[2], 4: kd[1], 6: kd[2]}.get(g)
            if poll and g == 5: dm = f"global_load_dwordx2 {v(PL,2)}, v{FO}, s[94:95] sc1"
            if len(mfs) == 8:
                gaps = [[ex[0]], [kr, c_prev], [ex[1]], [vr[0], c_own], [ex[2]], [vr[1], sal], [ex[3]], [dm]]
            else:
                gaps = [[ex[0], kr, c_prev], [ex[1], vr[0], sal], [ex[2], c_own, vr[1]], [ex[3], dm]]
            if do_pv and g % 2 == 1:
                mfs.append(lsum(g // 2, 1 - p, first_pv)); gaps.append([])
            if xq is not None:
                for gp in (gaps if g not in (3, 7) else gaps[:-1]): fill_gap(gp, xq, (i, g // 4))
            if g in (1, 5): gaps[-1].append(lambda g=g: e.need(tags(g + 1)))
            if g == 3:
                def bar():
                    if o['no_bar']: e.need(tags(4))
                    elif vneed is not None:
                        n_ = e.vm_count(vneed)
                        e.need(tags(4), extra="vmcnt(%d)" % n_ if n_ is not None else ""); e("s_barrier")
                    else:
                        e.need(tags(4), extra="vmcnt(16)"); e("s_barrier")
                gaps[-1].append(bar)
            if g == 7: gaps[-1] += list(tail)
            interleave(e, mfs, {k: [x for x in gp if x is not None] for k, gp in enumerate(gaps)})

    def rowmax(dst, first):
        for qt in range(4):
            a0, a1, m = S_(0, 0, qt), S_(0, 1, qt), dst(qt)
            if first: e(f"v_max3_f32 v{m}, v{a0}, v{a0+1}, v{MT(qt)}")
            else: e(f"v_max3_f32 v{m}, v{a0}, v{a0+1}, v{m}")
            e(f"v_max3_f32 v{m}, v{m}, v{a0+2}, v{a0+3}")
            e(f"v_max3_f32 v{m}, v{m}, v{a1}, v{a1+1}")
            e(f"v_max3_f32 v{m}, v{m}, v{a1+2}, v{a1+3}")
    def xlane_max(m, tmp):
        for op in ("v_permlane16_swap_b32", "v_permlane32_swap_b32"):
            for qt in range(4): e(f"v_mov_b32 v{tmp(qt)}, v{m(qt)}")
            for qt in range(4): e(f"{op} v{m(qt)}, v{tmp(qt)}")
            for qt in range(4): e(f"v_max_f32 v{m(qt)}, v{m(qt)}, v{tmp(qt)}")
    def qk0(look):
        for g in range(8): k_read(g, 0)()
        mf = []
        for g in range(8):
            def first(g=g):
                e.need([('k', g)])
                e(qk(g, 0, 0, c0="0"))
            mf += [first] + [qk(g, qt, 0, c0="0") for qt in range(1, 4)]
        interleave(e, mf, {4 * (g + 4) + 1: [k_read(g, 1)] for g in range(4)} if look else {})
        e("s_nop 4")

    e.label("K1_HEAD")
    qk0(True)
    M = lambda qt: T(qt)
    rowmax(M, True)
    xlane_max(M, lambda qt: T(4 + qt))
    for qt in range(4): e(f"v_sub_f32 v{M(qt)}, 0, v{M(qt)}")
    for qt in range(4):
        for i in range(4): e(f"v_mov_b32 v{CI(qt)+i}, v{M(qt)}")
    for k in range(32): e(f"v_add_f32 v{sreg(0,k)}, v{sreg(0,k)}, v{M(k//8)}")
    stamp(4)
    w0 = lambda q, vv: [lambda: e.need(([('k', 0), ('k', 1)] if q else []) + ([('v', 0), ('v', 1)] if vv else []))]
    emit_list(e, w0(1, 0))
    iteration(0, do_pv=False, carry=False, rd_lo=(1, 0), early_dma=False, tail=w0(1, 1))
    iteration(1, first_pv=True, tail=[f"s_mov_b32 s{sCnt}, 4"] + w0(1, 1))
    e.label("K1_ALOOP")
    snap = lambda: (e.lds_issued - e.lds_done, {k: e.lds_issued - x for k, x in e.tag.items() if k[0] in ('k', 'v')})
    st0 = snap()
    for i in (2, 3, 4): iteration(i, tail=w0(1, 1), poll=(i == 3))
    iteration(5, tail=[f"s_sub_u32 s{sCnt}, s{sCnt}, 1", f"s_cmp_eq_u32 s{sCnt}, s{sPub}"] + w0(1, 1) + ["s_cbranch_scc1 K1_PUB"])
    e.label("K1_PUBR")
    iteration(6, tail=[f"s_cmp_eq_u32 s{sCnt}, 0"] + w0(1, 1) + ["s_cbranch_scc1 K1_AEXIT"])
    saved = (e.lds_issued, e.lds_done, dict(e.tag))
    iteration(7, tail=[f"s_cmp_eq_u32 s{sCnt}, s{sX2}"] + w0(1, 1) + ["s_cbranch_scc1 K1_TAIL"])
    saved_tail = (e.lds_issued, e.lds_done, dict(e.tag))
    iteration(8, tail=w0(1, 1))
    iteration(9, tail=w0(1, 1) + ["s_branch K1_ALOOP"])
    assert snap() == st0, (snap(), st0)
    e.lds_issued, e.lds_done, e.tag = saved
    e.label("K1_AEXIT")
    def last_pv(extra):
        for g in range(4, 8): emit_list(e, v_read(g, 31))
        if not o['no_valu']: e(sm_cvt(1, 30))
        mf = []
        for g in range(8):
            def first(g=g):
                e.need([('v', g)])
                e(pv(g, 0, 1))
            mf += [first] + [pv(g, qt, 1) for qt in range(1, 4)]
            if g == 0: mf += [lsum(qt, 1) for qt in range(4)]
        fl = {}
        chk = []
        for qt in range(4):
            chk.append(f"v_cmp_gt_f32 vcc, s{sT(2)}, v{LS(qt)}")
            chk.append(f"s_and_b64 {s(sT(3),2)}, {s(sT(3),2)}, vcc")
        chk += [f"s_cmp_eq_u64 {s(sT(3),2)}, -1", f"s_cselect_b32 s{sT(2)}, 0, 1", f"s_andn2_b32 s{sT(2)}, s{sT(2)}, s{sFb}",
                f"v_mov_b32 v{T(8)}, s{sT(2)}", lambda: e.lds(f"ds_write_b32 v{FA}, v{T(8)}"), f"v_mov_b32 v{T(9)}, {FLAG}"]
        fl[12] = [f"s_mov_b32 s{sT(2)}, {o['thr']}", f"s_mov_b64 {s(sT(3),2)}, -1"]
        for n_, x_ in enumerate(chk): fl.setdefault(17 + n_, []).append(x_)
        for qt in range(4): fl.setdefault(31 + qt, []).append(f"v_rcp_f32 v{T(2*qt)}, v{LS(qt)}")
        interleave(e, mf, merge(fl, extra))
    def epi_groups(rd, cv, pk):
        out = []
        n = 0
        for uh in range(2):
            for qp in range(2):
                for ul in range(2):
                    u = 2 * uh + ul
                    it = []
                    if ul == 0: it.append(f"s_add_u32 s{sT(2)}, s{sOo}, {uh*16384+qp*4096}")
                    rb, cb = rd(n), cv(n)
                    for q2 in range(2):
                        for t in range(2):
                            for i in range(4): it.append(f"v_accvgpr_read_b32 v{rb+8*q2+4*t+i}, a{O_(2*u+t, 2*qp+q2)+i}")
                    if pk: it += [f"v_pk_mul_f32 {v(rb+i,2)}, {v(rb+i,2)}, {v(T(2*(2*qp+i//8)),2)} op_sel_hi:[1,0]" for i in range(0, 16, 2)]
                    else: it += [f"v_mul_f32 v{rb+i}, v{rb+i}, v{T(2*(2*qp+i//8))}" for i in range(16)]
                    it += [f"v_cvt_pk_bf16_f32 v{cb+i}, v{rb+2*i}, v{rb+2*i+1}" for i in range(8)]
                    for q2 in range(2):
                        it.append((lambda q2=q2, cb=cb, ul=ul: e.vm(f"buffer_store_dwordx4 {v(cb+4*q2,4)}, v{OD}, {s(sO,4)}, s{sT(2)} offen offset:{ul*2048+q2*1024}{ost}", ('ost',)), 8))
                    out.append(it); n += 1
        return out
    def vote_read(): return [lambda: e.lds(f"ds_read_b128 {v(T(12),4)}, v{T(9)}", ('vote',))]
    def vote_br(lbl):
        return [lambda: e.need([('vote',)]), f"v_or3_b32 v{T(12)}, v{T(12)}, v{T(13)}, v{T(14)}", f"v_or_b32 v{T(12)}, v{T(12)}, v{T(15)}", "s_nop 0",
                f"v_readfirstlane_b32 s{sT(3)}, v{T(12)}", f"s_cmp_lg_u32 s{sT(3)}, 0"] + ([f"s_cbranch_scc1 {lbl}"] if o['fb'] else [])
    unt = lambda x: x[0] if isinstance(x, tuple) else x

    iteration(31, do_qk=False, rd_lo=(0, 1), rd_hi=(0, 1))
    vd = vdma(31) if not o['no_dma'] else ["s_nop 0"] * 4
    last_pv({4: [vd[0]], 6: [vd[1]], 14: [vd[2]], 15: [vd[3]]})
    stamp(9)
    e("s_nop 4")
    for it in epi_groups(lambda n: 32 * (n % 2), lambda n: 32 * (n % 2) + 16, True): emit_list(e, [unt(x) for x in it])
    e("s_waitcnt lgkmcnt(0)"); e.lgkm0()
    e("s_barrier")
    emit_list(e, vote_read())
    for qt in range(4): e(f"v_mov_b32 v{MT(qt)}, 0xff800000")
    emit_list(e, vote_br("K1_FB"))
    stamp(10)
    e(f"s_mov_b32 s{sFb}, 0")
    e(f"s_mov_b32 s{sHead}, 1")
    e(f"s_mov_b32 s{sHb}, 262144")
    e(f"s_mov_b32 s{sX2}, 1")
    e(f"s_cmp_eq_u32 s{sWave}, 0"); e(f"s_cselect_b32 s{sPub}, 3, 99")
    if o['stamps'] and not o['qtrace'] and not o['ptrace'] and not o['otr']:
        e("s_waitcnt lgkmcnt(0)")
        e(f"s_mov_b64 {s(sStamp(8),2)}, {s(sStamp(4),2)}")
    e(f"s_add_u32 s{sOo}, s{sOo}, 262144")
    if o['cpf2']:
        e(f"s_getpc_b64 {s(56,2)}")
        e.label("K1_PF2")
        e(f"v_lshlrev_b32 v{t0}, 7, v{L}"); e(f"v_add_u32 v{t0}, s{sW8k}, v{t0}"); e(f"v_add_u32 v{t0}, K1_TAIL-K1_PF2, v{t0}"); e(f"v_min_u32 v{t0}, K1_END-K1_PF2, v{t0}")
        e(f"global_load_dword v{TD}, v{t0}, {s(56,2)}")
    for i in range(64): e(f"v_accvgpr_read_b32 v{128+i}, a{128+i}")
    e("s_branch K1_HEAD")
    def publish(add):
        return [f"s_add_u32 s{sT(3)}, s{sFl}, {add}", f"v_mov_b32 v{T(10)}, s{sFa}", f"v_mov_b32 v{T(11)}, s{sT(3)}"]
    e.label("K1_PUB")
    emit_list(e, publish(0))
    e("s_mov_b64 exec, 1")
    e(f"global_store_dword v{T(10)}, v{T(11)}, s[94:95] sc1")
    e("s_mov_b64 exec, -1")
    e("s_branch K1_PUBR")
    def gate_chk(odd):
        f = [f"v_sub_u32 v{T(10)}, v{PL}, v{SN}", f"v_sub_u32 v{T(11)}, v{PL+1}, v{SN+1}"]
        if odd: f += [f"v_and_b32 v{T(10)}, v{T(10)}, v{T(11)}", f"v_or_b32 v{T(11)}, v{T(10)}, v{T(11)}"]
        return f
    def gate(odd):
        f = [f"v_sub_u32 v{T(10)}, v{PL}, v{SN}", f"v_sub_u32 v{T(11)}, v{PL+1}, v{SN+1}"]
        if odd:
            f += [f"v_xor_b32 v{T(10)}, 1, v{T(10)}", f"v_xor_b32 v{T(11)}, 1, v{T(11)}", f"v_or_b32 v{T(10)}, v{T(10)}, v{T(11)}", f"v_cmp_ne_u32 vcc, 0, v{T(10)}",
                  lambda: (e(f"s_and_b64 vcc, vcc, {s(sMk,2)}"), e("s_cmp_eq_u64 vcc, 0"))]
        else:
            f += [f"v_max_u32 v{T(10)}, v{T(10)}, v{T(11)}", f"v_cmp_lt_u32 vcc, 1, v{T(10)}", "s_cmp_eq_u64 vcc, 0"]
        return f
    for odd, nm in ((0, "E"), (1, "O")):
        e.label(f"K1_SPIN{nm}")
        e(f"s_mov_b32 s{sSp}, {o['spin']}")
        e.label(f"K1_SPIN{nm}L")
        e(f"global_load_dwordx2 {v(PL,2)}, v{FO}, s[94:95] sc1")
        e("s_waitcnt vmcnt(0)")
        emit_list(e, gate(odd))
        e(f"s_cbranch_scc1 K1_GATE{nm}R")
        e(f"s_sub_u32 s{sSp}, s{sSp}, 1"); e(f"s_cmp_lg_u32 s{sSp}, 0")
        e(f"s_cbranch_scc1 K1_SPIN{nm}L")
        e(f"s_branch K1_GATE{nm}R")
    e.label("K1_FB")
    for qt in range(4): e(f"v_mov_b32 v{MT(qt)}, 0xff800000")
    e("s_waitcnt vmcnt(0) lgkmcnt(0)"); e.lgkm0()
    e("s_barrier")
    e(f"s_mov_b32 s{sCnt}, 32")
    e(f"s_mov_b32 s{sKV}, s{sHb}")
    e.label("K1_FBL")
    e(f"s_mov_b32 m0, s{sWK}"); e("s_nop 0")
    e(f"buffer_load_dwordx4 v{DP(0)}, {s(sK,4)}, s{sKV} offen lds")
    e(f"s_add_u32 m0, s{sWK}, 1056"); e("s_nop 0")
    e(f"buffer_load_dwordx4 v{DP(1)}, {s(sK,4)}, s{sKV} offen lds")
    e("s_waitcnt vmcnt(0)")
    e("s_barrier")
    qk0(False)
    e("s_barrier")
    e("s_nop 4")
    rowmax(MT, False)
    e(f"s_add_u32 s{sKV}, s{sKV}, 8192")
    e(f"s_sub_u32 s{sCnt}, s{sCnt}, 1")
    e(f"s_cmp_lg_u32 s{sCnt}, 0")
    e("s_cbranch_scc1 K1_FBL")
    for wh, tl in PRE_ORDER: emit_list(e, pre(wh, tl))
    e(f"s_add_u32 s{sKV}, s{sHb}, {5*8192}")
    e(f"s_mov_b32 s{sFb}, 1")
    e("s_waitcnt vmcnt(0)")
    e("s_barrier")
    e("s_branch K1_HEAD")
    e.label("K1_TAIL")
    e.lds_issued, e.lds_done, e.tag = saved_tail
    e.vm_done = e.vm_issued
    for i in range(16, 24):
        e.vm("", ('V', i + 5)); e.vm("", ('V', i + 5)); e.vm("", ('K', i + 8))
        if i == 19: e.vm("", ('poll', 0))
        e.vm("", ('K', i + 8))
    opol, wpol = pol(o['opol']), pol(o['wpol'])
    def w2_dma(st):
        base = WPERM[st % 8] * 20480
        f = [(f"s_add_u32 m0, s{sLb}, {base}", 4), (f"s_mov_b32 s{sW2o}, {st*20480}", 4)]
        for p in range(4):
            f.append((lambda p=p: e.vm(f"buffer_load_dwordx4 v{WD2}, {s(sW2,4)}, s{sW2o} offen offset:{p*1024}{wpol} lds", ('W', st)), 8))
        f.append((f"s_add_u32 m0, s{sLb}, {base+4096}", 4))
        f.append((lambda: e.vm(f"buffer_load_dwordx4 v{WD2+1}, {s(sW2,4)}, s{sW2o} offen{wpol} lds", ('W', st)), 8))
        return f
    def o2_load(st):
        f = [(f"s_mov_b32 s{sO2o}, {st*16384}", 4)]
        for x in range(4):
            f.append((lambda x=x: e.vm(f"buffer_load_dwordx4 {OF2(2*st+x//2, x%2)}, v{OD2}, {s(sO2,4)}, s{sO2o} offen offset:{x*1024}{opol}", ('O', st)), 8))
        return f
    NB = o['nb']
    steps = [[(k, f) for f in range(10)] for k in range(64 - NB)]
    for half in (5, 0):
        for j in range(NB // 2): steps.append([(64 - NB + 2 * j + x // 5, half + x % 5) for x in range(10)])
    def w2_read(n, x):
        k, f = steps[n][x]
        sl = WPERM[(k // 2) % 8]
        r = (RK if f < 5 else RS) + sl // 3
        return lambda: e.lds(f"ds_read_b128 {W2(n%2,x)}, v{r} offset:{(sl%3)*20480+(k%2)*10240+(f%5)*1024}", ('w2', n % 2, x))
    PD2 = lambda f: [80, 84, 88, 92, 112, 116, 120, 124, 196, 200][f]
    xq = []
    def q_add(pos, items): xq.extend((pos, it, c) for it, c in items)
    def vd_items(i):
        d = vdma(i)
        return [(d[0], 4), (lambda: e.vm(d[1], ('V', i + 6)), 8), (lambda: e.vm(d[2], ('V', i + 6)), 8), (d[3], 4)]
    q_add((24, 0), vd_items(23))
    q_add((24, 1), [(x, 4) for x in gate(0)] + [(lambda: (e("s_cbranch_scc0 K1_SPINE"), e.label("K1_GATEER"), stamp(13)), 4)])
    q_add((25, 0), vd_items(24)); q_add((25, 1), vd_items(25))
    q_add((25, 1), w2_dma(0) + o2_load(0) + w2_dma(1) + o2_load(1))
    pc = [(f"v_mov_b32 v{T(12+i)}, -1", 4) for i in range(4)] + [(lambda f=f: e.vm(f"global_store_dwordx4 v{EXS+f//8}, {v(T(12),4)}, s[94:95] offset:{(f%8)*1024-4096} sc1"), 8) for f in range(10)]
    q_add((27, 1), w2_dma(2) + o2_load(2)); q_add((29, 1), w2_dma(3) + o2_load(3)); q_add((30, 1), w2_dma(4) + w2_dma(5)); q_add((31, 1), w2_dma(6))
    h0 = 2 * o['pcp'][0] + o['pcp'][1]
    q_add((24, 1), pc[:4])
    for f in range(10): q_add(divmod(h0 + f // o['pcn'], 2), pc[4 + f:5 + f])
    xq.sort(key=lambda x: x[0])
    for i in range(24, 31):
        vn = [('V', i)] + ([('K', i + 2)] if i + 2 <= 31 else []) + ([('poll', 0)] if i == 24 else [])
        iteration(i, tail=w0(1 if i < 30 else 0, 1), xq=xq, vneed=vn, rd_hi=(1 if i < 30 else 0, 1))
    iteration(31, do_qk=False, rd_lo=(0, 1), rd_hi=(0, 1), xq=xq, vneed=[('V', 31), ('W', 0)])
    ex = {}
    for f in range(10): ex[2 + f if f < 8 else 5 + f] = [w2_read(0, f)]
    g_ = 0; nv = 0
    while xq and g_ < 34 and nv < o['lpv']:
        _, it, c = xq.pop(0); ex.setdefault(g_, []).append(it); g_ += 1 if c < 8 else 3; nv += c == 8
    def bar0():
        n_ = e.vm_count([('O', 0)])
        e(f"s_waitcnt {'vmcnt(%d) ' % n_ if n_ is not None else ''}lgkmcnt(0)"); e.lgkm0(); e("s_barrier")
    ex[35] = [bar0]
    last_pv(ex)
    stamp(5)
    jobs = [(1, w2_dma(7))] + [(1, o2_load(st)) for st in range(4, 8)]
    for st in range(8, 32):
        pass
    la = o['la']
    jobs = [(max(1, 2 * (7 - la) + 1), w2_dma(7))] + [(max(1, 2 * (st - la) + 2), o2_load(st)) for st in range(4, 8)]
    for st in range(8, 32):
        use = min(n for n in range(64) if any(kk // 2 == st for kk, _ in steps[n]))
        jobs.append((max(use - 2 * la + 1, 2 * (st - 8) + 3), w2_dma(st)))
        jobs.append((max(use - 2 * la + 2, 2 * (st - 8) + 2, o['gate'] if st >= 16 else 0), o2_load(st)))
    if o['rate']:
        jobs = []
        for st in range(4, 32):
            if st >= 7: jobs.append((max(1, 2 * (st - 8) + 3), w2_dma(st), st))
            jobs.append((max(1, 2 * (st - 8) + 2, o['gate'] if st >= 16 else 0), o2_load(st), st))
        nv_ = sum(1 for _, _, c in xq if c == 8); j2 = []
        for k_, its, st in jobs:
            use = min(n for n in range(64) if any(kk // 2 == st for kk, _ in steps[n]))
            kk = max(k_, min(int(o['r0'] + nv_ / o['rate']), use - 2 * o['lmin']))
            j2.append((kk, its)); nv_ += sum(1 for _, c in its if c == 8)
        jobs = j2
    jobs.sort(key=lambda x: x[0])
    assert not any(c == 8 and it in [p[0] for p in pc] for _, it, c in xq)
    lq = [(0, it, c) for _, it, c in xq] + [(k_, it, c) for k_, its in jobs for it, c in its]
    EB = [80, 88, 196, 240][:o['ebuf']]
    eq, sq = [], []
    for n, it in enumerate(epi_groups(lambda n: 112, lambda n: EB[n % len(EB)], False)):
        sal = [x for x in it if isinstance(x, str) and x.startswith("s_")]
        va = [x for x in it if isinstance(x, str) and not x.startswith("s_")]
        eq += [(n, x, 4 , j == 32) for j, x in enumerate(va)]
        sq += [(n, x, 4) for x in sal] + [(n, x[0], 8) for x in it if isinstance(x, tuple)]
    pub_at = None
    if 'l' in o['dbg']:
        for st in range(32): e.vm("", ('W', st)); e.vm("", ('O', st))
        lq = []
    if 'e' in o['dbg']: eq = []
    if 's' in o['dbg']: sq = sq[-1:]
    ensured = 0
    kA = 64 - NB // 2
    ex_st = [(lambda f=f: e.vm(f"global_store_dwordx4 v{EXS+f//8}, {v(40+4*f,4)}, s[94:95] offset:{(f%8)*1024-4096} sc1"), 8) for f in range(10)]
    ex_ld = lambda f: f"global_load_dwordx4 {v(PD2(f),4)}, v{T(f//8)}, s[94:95] offset:{(f%8)*1024-4096} sc1"
    ex_pre = [lambda: (e(f"s_bitcmp1_b32 s{J}, 1"), e(f"s_mov_b32 s{TMP}, {8*40960}"), e(f"s_cselect_b32 s{TMP}, s{TMP}, {(-8*40960) & 0xffffffff}")),
              f"v_add_u32 v{T(0)}, s{TMP}, v{EXS}", f"v_add_u32 v{T(1)}, s{TMP}, v{EXS+1}", f"s_mov_b32 s{sSp}, {o['spin']}"]
    for k in range(64):
        gaps = [[] for _ in range(20)]
        sh = 1 if k == 0 else 0
        if k == 0:
            gaps[0] += vote_read()
            for n_, x in enumerate(vote_br("K1_FB")): gaps[12 + n_].append(x)
        if k < 63:
            for f in range(10): gaps[2 * f if k else f + 1].append(w2_read(k + 1, f))
        if k == o['gate'] - 4: gaps[11].append((lambda: e.vm(f"global_load_dwordx2 {v(PL,2)}, v{FO}, s[94:95] sc1", ('poll', 1)), 8))
        if k == o['gate'] - 1:
            def pw():
                n_ = e.vm_count([('poll', 1)])
                if n_ is not None: e(f"s_waitcnt vmcnt({n_})")
            gl = [pw] + gate(1) + [lambda: (e("s_cbranch_scc0 K1_SPINO"), e.label("K1_GATEOR"))]
            for n_, x in enumerate(gl): gaps[10 + n_].append(x)
        if pub_at == k:
            for n_, x in enumerate(publish(1)): gaps[n_].append(x)
            gaps[11].append((lambda: (e(f"s_cmp_eq_u32 s{sWave}, 0"), e("s_cselect_b64 exec, 1, 0"), e(f"global_store_dword v{T(10)}, v{T(11)}, s[94:95] sc1"), e("s_mov_b64 exec, -1")), 8))
        if k == 40:
            for n_, x in enumerate(ex_pre): gaps[2 * n_ + 1].append(x)
        if NB:
            for f in range(10):
                g_ = 5 + o['xsp'] * f
                if k == kA + g_ // 20: gaps[(g_ % 20) | 1].append(ex_st[f])
            assert kA + (5 + o['xsp'] * 9) // 20 <= 63
        if NB and k == 64 - o['xl']:
            for f in range(10): gaps[min(2 * f + 1, 19)].append((ex_ld(f), 8))
        nv = 0; ns = 0
        cap = o['ecap'] if eq else 8
        for gi, gp in enumerate(gaps):
            c = sum(cost(x) for x in gp)
            while lq and lq[0][0] <= k and nv < (o['vmk0'] if k < 4 else o['vmk']) and c + lq[0][2] <= 8:
                _, it, cc = lq.pop(0); gp.append((it, cc)); c += cc; nv += cc == 8
            if not (k == o['gate'] - 1 or pub_at == k or (k == 0 and gi >= 12)):
                while sq and k >= o['est'] and (not eq or eq[0][0] > sq[0][0]) and c + sq[0][2] <= max(cap, 12) and (sq[0][2] < 8 or ns < o['spk']):
                    _, it, cc = sq.pop(0); gp.append((it, cc)); c += cc; ns += cc == 8
                while eq and c + 4 <= cap and not (eq[0][3] and (eq[0][0] >= 2 and k == 0 or sq and sq[0][0] <= eq[0][0] - len(EB))):
                    _, it, cc, _ = eq.pop(0); gp.append((it, cc)); c += cc
        need_st = max(kk // 2 for kk, _ in steps[min(k + 1, 63)])
        mf = []
        for x in range(10):
            for qq in range(2):
                def m(x=x, qq=qq):
                    nonlocal pub_at, ensured
                    kk, f = steps[k][x]
                    if qq == 0 and x == 0 and need_st > ensured:
                        vn = [('W', need_st), ('O', need_st)]
                        ensured = need_st
                        if not eq and not sq and pub_at is None and k >= epi_done[0] + o['pubst']:
                            vn.append(('ost',)); pub_at = -1
                        n_ = e.vm_count(vn)
                        if k > 1:
                            e.need([('w2', k % 2, y) for y in range(4)], extra="vmcnt(%d)" % n_ if n_ is not None else ""); e("s_barrier")
                        else:
                            e(f"s_waitcnt {'vmcnt(%d) ' % n_ if n_ is not None else ''}lgkmcnt(0)"); e.lgkm0(); e("s_barrier")
                    elif qq == 0 and x in (0, 4, 7): e.need([('w2', k % 2, y) for y in range(x, {0: 4, 4: 7, 7: 10}[x])])
                    acc = v(AC2(f, qq), 4)
                    e(f"{MF} {acc}, {W2(k%2,x)}, {OF2(kk,qq)}, {acc if k else 0}")
                mf.append(m)
        if k == 0: epi_done = [99]
        if k in o['otr']: e(f"s_memtime {s(sStamp(1 + o['otr'].index(k)), 2)}")
        if not eq and not sq and epi_done[0] == 99: epi_done[0] = k
        interleave(e, mf, {n_: [unt(x) for x in gp] for n_, gp in enumerate(gaps)})
        if pub_at == -1: pub_at = k + 1
        if k == 31: stamp(6)
    assert not lq and not eq and not sq and pub_at is not None and pub_at < o['gate'] - 1, (len(lq), len(eq), pub_at)
    print("epilogue done at kstep", epi_done[0], "publish at", pub_at, file=sys.stderr)
    stamp(7)
    if not NB:
        e("s_nop 7")
        for x, _ in ex_st: x()
    else: e("s_branch K1_EXW")
    e.label("K1_EXL")
    for f in range(10): e(ex_ld(f))
    e.label("K1_EXW")
    e("s_waitcnt vmcnt(0)")
    pr = [PD2(f) + i for f in range(10) for i in range(4)]
    e(f"v_max3_u32 v{T(2)}, v{pr[0]}, v{pr[1]}, v{pr[2]}"); e(f"v_max3_u32 v{T(3)}, v{pr[3]}, v{pr[4]}, v{pr[5]}")
    for i in range(6, 40, 2): e(f"v_max3_u32 v{T(2+(i//2)%2)}, v{T(2+(i//2)%2)}, v{pr[i]}, v{pr[i+1]}")
    e(f"v_max_u32 v{T(2)}, v{T(2)}, v{T(3)}")
    e(f"v_cmp_eq_u32 vcc, -1, v{T(2)}")
    e(f"s_sub_u32 s{sSp}, s{sSp}, 1")
    e(f"s_cselect_b64 vcc, 0, vcc")
    e("s_cmp_lg_u64 vcc, 0")
    e("s_cbranch_scc1 K1_EXL")
    stamp(11)
    e(f"s_mov_b32 s{TMP}, {16*2560}")
    for f in range(5):
        for qq in range(2):
            ac = AC2(f, qq)
            for i in range(0, 4, 2): e(f"v_pk_add_f32 {v(ac+i,2)}, {v(ac+i,2)}, {v(PD2(2*f+qq)+i,2)}")
            e(f"v_cvt_pk_bf16_f32 v{ac}, v{ac}, v{ac+1}")
            e(f"v_cvt_pk_bf16_f32 v{ac+1}, v{ac+2}, v{ac+3}")
            e(f"buffer_store_dwordx2 {v(ac,2)}, v{SD}, {s(sOut,4)}, {'s%d' % TMP if qq else '0'} offen offset:{f*32}")
    if o['stamps']:
        stamp(12)
        e(f"s_memrealtime {s(sStamp(15), 2)}")
        dump_stamps(e, sWave, sT(0), T(0), 96, 94, 64 << 20)
    e.label("K1_END")
    e("s_endpgm")
    return e

HEADER = open("concat_heads__gqa_block_cached__gqa_block_cached__near_ridge.s.ref").read().split("; Override launch")[0]

def build(o):
    e1 = gen_k1(o)
    errs = check_hazards(e1.lines, "k1")
    out = HEADER
    out += f"; @launch kernel={K1} grid=(256,1,1) block=(256,1,1) lds=163840\n"
    out += '.amdgcn_target "amdgcn-amd-amdhsa--gfx950"\n.text\n'
    out += e1.text()
    out += kernel_desc(K1, 512, 256)
    for x in errs[:40]: print(x, file=sys.stderr)
    return out

if __name__ == "__main__":
    o = dict(DEF)
    for kv in sys.argv[2:]:
        k, val = kv.split("=")
        assert k in o, k
        o[k] = val if isinstance(o[k], str) else json.loads(val)
    open(sys.argv[1], "w").write(build(o))
```
